```python
import torch

def _softmax(x, axis=-1):
    return torch.softmax(x, dim=axis)
def _gelu(x):
    return torch.nn.functional.gelu(x, approximate="tanh")
def _silu(x):
    return torch.nn.functional.silu(x)
def _sigmoid(x):
    return torch.sigmoid(x)
def _layernorm(x, axis=-1, eps=1e-5):
    m = x.mean(dim=axis, keepdim=True)
    v = x.var(dim=axis, keepdim=True, unbiased=False)
    return (x - m) / torch.sqrt(v + eps)
def _scatter_add(tgt, idx, src, axis=0):
    return tgt.clone().index_add_(axis, idx, src)
def _segment_sum(src, seg, n):
    out = torch.zeros((n,) + src.shape[1:], dtype=src.dtype)
    return out.index_add_(0, seg, src)
def _pad(x, pw):
    flat = tuple(v for pair in reversed(pw) for v in pair)
    return torch.nn.functional.pad(x, flat)

kernel_name = 'sequential_preLN__sliding_block_cached__glu_gated_bilinear__decode'

def setup_inputs():

    _w = (lambda a: (lambda t: t.to(torch.bfloat16) if t.is_floating_point() else t)(torch.as_tensor(a)))
    def _A_setup():
        B, Sq, D = 8, 1, 512
        Hq, Hkv, Sk, Dh = 32, 8, 8192, 128
        assert Hq % Hkv == 0, (Hq, Hkv)
        return {
            "x": _w((lambda *s: torch.randn(*s, dtype=torch.bfloat16) * 0.05)(B, Sq, D)),
            "k_cache": _w((lambda *s: torch.randn(*s, dtype=torch.bfloat16) * 1.6)(B, Hkv, Sk, Dh)),
            "v_cache": _w((lambda *s: torch.randn(*s, dtype=torch.bfloat16) * 0.8)(B, Hkv, Sk, Dh)),
            "wq": _w((lambda *s: torch.randn(*s, dtype=torch.bfloat16) * 1.6)(D, Hq * Dh) * (D ** -0.5)),
            "wo": _w((lambda *s: torch.randn(*s, dtype=torch.bfloat16) * 0.8)(Hq * Dh, D) * ((Hq * Dh) ** -0.5)),
        }
    _A_in = _A_setup()

    def _B_setup():
        B, S, D, F = 8, 1, 512, 1792
        return {
            "x": _w((lambda *s: torch.randn(*s, dtype=torch.bfloat16) * 0.05)(B, S, D)),
            "w_gate": _w((lambda *s: torch.randn(*s, dtype=torch.bfloat16) * 0.4)(D, F) * (D ** -0.5)),
            "w_up": _w((lambda *s: torch.randn(*s, dtype=torch.bfloat16) * 0.4)(D, F) * (D ** -0.5)),
            "w_down": _w((lambda *s: torch.randn(*s, dtype=torch.bfloat16) * 0.4)(F, D) * (F ** -0.5)),
        }
    _B_in = _B_setup()

    return {
        "A_x": _A_in["x"],
        "A_k_cache": _A_in["k_cache"],
        "A_v_cache": _A_in["v_cache"],
        "A_wq": _A_in["wq"],
        "A_wo": _A_in["wo"],
        "B_x": _B_in["x"],
        "B_w_gate": _B_in["w_gate"],
        "B_w_up": _B_in["w_up"],
        "B_w_down": _B_in["w_down"],
    }

def reference(A_x, A_k_cache, A_v_cache, A_wq, A_wo, B_x, B_w_gate, B_w_up, B_w_down):
    def _A_ref(x, k_cache, v_cache, wq, wo):
        B, Sq, D = x.shape
        Hq, Dh = 32, 128
        Hkv, Sk = k_cache.shape[1], k_cache.shape[2]
        W = min(4096, max(256, Sk // 4))
        rep = Hq // Hkv
        q = (lambda x, *d: x.permute(*d))((x @ wq).reshape(B, Sq, Hq, Dh), 0, 2, 1, 3)
        k = (lambda x, n, axis: torch.repeat_interleave(x, n, dim=axis))(k_cache[:, :, Sk - W:, :], rep, axis=1)
        v = (lambda x, n, axis: torch.repeat_interleave(x, n, dim=axis))(v_cache[:, :, Sk - W:, :], rep, axis=1)
        scores = torch.einsum("bhqd,bhkd->bhqk", q, k) * (Dh ** -0.5)
        p = _softmax(scores, axis=-1)
        o = torch.einsum("bhqk,bhkd->bhqd", p, v)
        return (lambda x, *d: x.permute(*d))(o, 0, 2, 1, 3).reshape(B, Sq, Hq * Dh) @ wo

    def _B_ref(x, w_gate, w_up, w_down):
        g = torch.einsum("bsd,df->bsf", x, w_gate)
        u = torch.einsum("bsd,df->bsf", x, w_up)
        h = g * u
        return torch.einsum("bsf,fd->bsd", h, w_down)

    x = A_x
    h = x + _A_ref(_layernorm(x, axis=-1), A_k_cache, A_v_cache, A_wq, A_wo)
    h2 = h + _B_ref(_layernorm(h, axis=-1), B_w_gate, B_w_up, B_w_down)
    return h2
```

```python
NAME = "sequential_preLN__sliding_block_cached__glu_gated_bilinear__decode"
class Asm:
    def __init__(self): self.lines = []
    def __call__(self, s):
        for l in s.strip("\n").split("\n"): self.lines.append("    " + l.strip() if not l.strip().endswith(":") else l.strip())
    def label(self, s): self.lines.append(s + ":")
    def text(self): return "\n".join(self.lines) + "\n"

def kernel_file(launch_lines, kernels):
    o = []
    o += launch_lines
    o.append('.amdgcn_target "amdgcn-amd-amdhsa--gfx950"')
    o.append(".text")
    for (label, body, vg, sg, acc) in kernels:
        o.append(f".globl {label}\n.p2align 8\n.type {label},@function\n{label}:")
        o.append(body)
    o.append('.section .rodata,"a"')
    for (label, body, vg, sg, acc) in kernels:
        o.append(f""".p2align 6
.amdhsa_kernel {label}
  .amdhsa_next_free_vgpr {vg}
  .amdhsa_next_free_sgpr {sg}
  .amdhsa_accum_offset {acc}
  .amdhsa_group_segment_fixed_size 0
  .amdhsa_kernarg_size 96
  .amdhsa_user_sgpr_count 2
  .amdhsa_user_sgpr_kernarg_segment_ptr 1
  .amdhsa_system_sgpr_workgroup_id_x 1
  .amdhsa_float_denorm_mode_32 3
.end_amdhsa_kernel""")
    return "\n".join(o) + "\n"
```

```python
import re
TRANS = ("v_exp_f32","v_log_f32","v_rcp_f32","v_rsq_f32","v_sqrt_f32","v_sin_f32","v_cos_f32")
def regs(tok):
    tok = tok.strip()
    tok = re.sub(r"^-|^abs\(|\)$|^\|", "", tok).rstrip("|")
    m = re.fullmatch(r"([vsa])(\d+)", tok)
    if m: return {(m.group(1), int(m.group(2)))}
    m = re.fullmatch(r"([vsa])\[(\d+):(\d+)\]", tok)
    if m: return {(m.group(1), i) for i in range(int(m.group(2)), int(m.group(3)) + 1)}
    if tok == "vcc": return {("s", 106), ("s", 107)}
    if tok == "vcc_lo": return {("s", 106)}
    if tok == "vcc_hi": return {("s", 107)}
    if tok == "exec": return {("s", 126), ("s", 127)}
    if tok == "m0": return {("s", 124)}
    return set()
def parse(line):
    l = line.split(";")[0].strip()
    if not l or l.endswith(":") or l.startswith("."): return None
    p = l.split(None, 1)
    op = p[0]
    rest = p[1] if len(p) > 1 else ""
    ops = [t.strip() for t in re.split(r",(?![^\[]*\])", rest)]
    mods = ""
    if ops:
        q = ops[-1].split(None, 1)
        if q:
            ops[-1] = q[0]; mods = q[1] if len(q) > 1 else ""
    return op, ops, mods
def classify(op, ops, mods):
    d = dict(op=op, w=set(), r=set(), valu=False, mfma=False, vmem=False, ds=False, salu=False, dpp=False, trans=False, srcc=set(), store_data=set(), ab=set())
    R = [regs(o) for o in ops]
    if op.startswith("v_mfma"):
        d["mfma"] = True; d["w"] = R[0]; d["ab"] = R[1] | R[2]; d["srcc"] = R[3]; d["r"] = R[1] | R[2] | R[3]
    elif op.startswith("v_"):
        d["valu"] = True
        d["trans"] = op.replace("_e32","").replace("_e64","") in TRANS
        d["dpp"] = "_dpp" in op or "row_" in mods or "quad_perm" in mods
        if op.startswith("v_cmp"):
            d["w"] = R[0]; d["r"] = set().union(*R[1:])
        elif op.startswith("v_permlane") and "swap" in op:
            d["w"] = R[0] | R[1]; d["r"] = R[0] | R[1]
        elif op.startswith(("v_add_co", "v_sub_co", "v_addc_co", "v_subb_co")):
            d["w"] = R[0] | R[1]; d["r"] = set().union(*R[2:])
        else:
            d["w"] = R[0]; d["r"] = set().union(*R[1:]) if len(R) > 1 else set()
            if op.startswith(("v_fmac", "v_dot2c", "v_writelane")): d["r"] |= R[0]
            if op.startswith("v_cndmask") and len(ops) == 3: d["r"] |= regs("vcc")
    elif op.startswith(("buffer_", "global_")):
        d["vmem"] = True
        if op in ("buffer_inv", "buffer_wbl2"): pass
        elif "load" in op:
            if " lds" in " " + mods: d["r"] = set().union(*R) | regs("m0"); d["ldsdma"] = True
            else: d["w"] = R[0]; d["r"] = set().union(*R[1:])
        else:
            d["r"] = set().union(*R)
            if "x4" in op or "x3" in op: d["store_data"] = R[0] if op.startswith("buffer") else R[1]
    elif op.startswith("ds_"):
        d["ds"] = True
        if "read" in op or "permute" in op or "swizzle" in op: d["w"] = R[0]; d["r"] = set().union(*R[1:])
        else: d["r"] = set().union(*R)
    elif op.startswith("s_"):
        d["salu"] = True
        if op.startswith(("s_cmp", "s_cbranch", "s_branch", "s_waitcnt", "s_nop", "s_barrier", "s_sleep", "s_endpgm", "s_setprio")): d["r"] = set().union(*R) if R else set()
        else:
            d["w"] = R[0] if R else set(); d["r"] = set().union(*R[1:]) if len(R) > 1 else set()
            if "saveexec" in op: d["w"] |= regs("exec")
    return d
def slots(op, ops):
    if op == "s_nop": return int(ops[0], 0) + 1
    return 1
def check(text):
    ins = []
    for n, line in enumerate(text.split("\n")):
        p = parse(line)
        if p: ins.append((n + 1, line.strip(), classify(*p), slots(p[0], p[1])))
    errs = []
    for i, (ln, txt, c, _) in enumerate(ins):
        dist = 0
        for j in range(i - 1, max(-1, i - 24), -1):
            pln, ptxt, p, ps = ins[j]
            need = 0
            vw = {x for x in p["w"] if x[0] in "va"}; sw = {x for x in p["w"] if x[0] == "s"}
            if p["valu"]:
                if c["mfma"] and vw & c["r"]: need = max(need, 2)
                if c["valu"] and c["dpp"] and vw & c["r"]: need = max(need, 2)
                if c["op"].startswith("v_permlane") and vw & c["r"]: need = max(need, 2)
                if c["op"].startswith(("v_readlane", "v_readfirstlane")) and vw & c["r"]: need = max(need, 1)
                if c["valu"] and sw & c["r"]: need = max(need, 2)
                if c["op"].startswith(("v_readlane", "v_writelane")) and sw & c["r"]: need = max(need, 4)
                if c["vmem"] and sw & c["r"]: need = max(need, 5)
                if p["trans"] and c["valu"] and not c["trans"] and vw & c["r"]: need = max(need, 1)
                if p["op"].startswith("v_dot") and (c["valu"] or c["mfma"] or c["vmem"] or c["ds"]) and vw & (c["r"] | c["w"]):
                    same = c["op"] == p["op"]
                    if not same: need = max(need, 3)
            if p["mfma"]:
                passes = 8 if "32x32" in p["op"] else 4
                big = {4: 8, 8: 12}[passes]
                if c["mfma"]:
                    if p["w"] & c["ab"]: need = max(need, big)
                    if p["w"] & c["srcc"] and p["w"] != c["srcc"]: need = max(need, big - 2)
                    if p["w"] & c["w"] and not (p["w"] == c["srcc"]): need = max(need, big)
                elif (c["valu"] or c["vmem"] or c["ds"]) and p["w"] & (c["r"] | c["w"]): need = max(need, big)
                if c["valu"] and p["srcc"] & c["w"]: need = max(need, {4: 3, 8: 7}[passes])
            if p["store_data"] and p["store_data"] & c["w"]: need = max(need, 2 if c["valu"] else 1)
            if p["salu"] and regs("m0") & p["w"] and c.get("ldsdma"): need = max(need, 1)
            if need > dist: errs.append(f"line {ln}: '{txt}' needs {need} states after line {pln}: '{ptxt}' (has {dist})")
            dist += ps
    return errs
if __name__ == "__main__":
    import sys
    e = check(open(sys.argv[1]).read())
    print("\n".join(e) if e else "hazard check clean")
```

```python
import sys, struct
from asmlib import *
import hazard

def f2u(x): return struct.unpack("<I", struct.pack("<f", x))[0]

QP = 0x010000; ST = 0x090000; OP = 0x0A0000; HP = 0x120000; HH = 0x160000; DP = 0x180000
STAMP = 0x10000000
L_WQ = 0x0
L_OR = 0x0
L_Q = 0x4000
L_SM = 0x4400
L_SL = 0x4480
L_A = 0x4800
L_X = 0x6A00
L_W = 0x7000
L_G = 0x7000; L_U = 0xF000; L_D = 0x17000
LDS_BYTES = 0x20000

def gen(fname, stamps=False, kvpol="nt", wpol="nt", delay=10, maxspin=200000):
    a = Asm()
    nst = [0]
    sX, sSLOT, sWV = "s3", "s4", "s5"
    sB, sS = "s6", "s7"
    sT, sFF = "s8", "s9"
    sTMP = ["s10", "s11", "s12", "s13", "s14", "s15"]
    P = {n: 16 + 2 * i for i, n in enumerate(["x", "k", "v", "wq", "wo", "bx", "wg", "wu", "wd", "out", "dbg", "ws"])}
    rK, rV, rWS, rA, rB = "s[40:43]", "s[44:47]", "s[48:51]", "s[52:55]", "s[56:59]"
    sKV = ["s60", "s61", "s62", "s63"]
    sSPIN = "s64"
    sM1, sM2 = "s[66:67]", "s[68:69]"
    sC = ["s70", "s71", "s72", "s73"]
    sW = 76
    def srd(r, ptr, size):
        b = int(r[2:r.index(":")])
        a(f"s_mov_b32 s{b}, s{P[ptr]}\ns_mov_b32 s{b+1}, s{P[ptr]+1}\ns_mov_b32 s{b+2}, {hex(size)}\ns_mov_b32 s{b+3}, 0x20000")
    def stamp(idx, cond_wave=None):
        if not stamps: return
        lab = f"L_st{nst[0]}"; nst[0] += 1
        if cond_wave is not None:
            a(f"s_cmp_lg_u32 {sWV}, {cond_wave}\ns_cbranch_scc1 {lab}")
        a(f"s_memrealtime s[92:93]\ns_waitcnt lgkmcnt(0)\nv_writelane_b32 v62, s92, {idx}\nv_writelane_b32 v63, s93, {idx}")
        if cond_wave is not None: a(f"{lab}:")
    vL, vN, vG = "v1", "v2", "v3"
    vT = ["v4", "v5", "v6", "v7"]
    vL16 = "v8"
    vKoff = "v9"
    t = [f"v{i}" for i in range(10, 32)]
    ACC = 32
    QB = 40
    KR = 64; VR = 128; DS_ = 192; PM = 224
    def vr(b, n=4): return f"v[{b}:{b+n-1}]"

    def allreduce(regs_, steps, op="v_add_f32", tmp=None):
        tmp = tmp or t[14:22]
        for st in steps:
            if st in (16, 32):
                for r, x in zip(regs_, tmp): a(f"v_mov_b32 {x}, {r}")
                if len(regs_) < 3: a(f"s_nop {2 - len(regs_)}" if len(regs_) < 2 else "s_nop 0")
                else: a("s_nop 0")
                for r, x in zip(regs_, tmp): a(f"v_permlane{st}_swap_b32 {r}, {x}")
                for r, x in zip(regs_, tmp): a(f"{op} {r}, {r}, {x}")
            else:
                ctl = {1: "quad_perm:[1,0,3,2]", 2: "quad_perm:[2,3,0,1]", 4: "row_half_mirror", 8: "row_ror:8"}[st]
                a("s_nop 1")
                for r in regs_: a(f"{op}_dpp {r}, {r}, {r} {ctl} row_mask:0xf bank_mask:0xf")

    def tagpack(dst, src):
        for i in range(4): a(f"v_bfi_b32 v{dst+i}, {sFF}, {vT[i]}, v{src+i}")

    npoll = [0]
    def poll(loads, grans, fulltag=(), sleep=2):
        k = npoll[0]; npoll[0] += 1
        a(f"s_mov_b32 {sSPIN}, 0\nL_poll{k}:")
        for l in loads: a(l)
        a("s_waitcnt vmcnt(0)")
        acc = t[21]
        first = True
        for g in grans:
            for i in range(4): a(f"v_xor_b32 v{g+i}, {vT[i]}, v{g+i}")
        ws_ = [g + i for g in grans for i in range(4)]
        if ws_:
            a(f"v_or3_b32 {acc}, v{ws_[0]}, v{ws_[1]}, v{ws_[2]}")
            rest = ws_[3:]
            while len(rest) >= 2:
                a(f"v_or3_b32 {acc}, {acc}, v{rest[0]}, v{rest[1]}"); rest = rest[2:]
            if rest: a(f"v_or_b32 {acc}, {acc}, v{rest[0]}")
            a(f"v_and_b32 {acc}, 0xff, {acc}")
            first = False
        for g in fulltag:
            if first: a(f"v_xor_b32 {acc}, {sT}, v{g+3}"); first = False
            else: a(f"v_xor_b32 {t[20]}, {sT}, v{g+3}\nv_or_b32 {acc}, {acc}, {t[20]}")
        a(f"""
        v_cmp_ne_u32 vcc, 0, {acc}
        s_add_u32 {sSPIN}, {sSPIN}, 1
        s_cmp_eq_u64 vcc, 0
        s_cbranch_scc1 L_pd{k}
        s_cmp_gt_u32 {sSPIN}, {maxspin}
        s_cbranch_scc1 L_pd{k}
        s_sleep {sleep}
        s_branch L_poll{k}
        L_pd{k}:
        """)

    def rnd1(dst, src):
        a(f"v_cvt_pk_bf16_f32 {dst}, {src}, {src}\nv_and_b32 {dst}, 0xffff0000, {dst}")
    def ln_scalars(vsum, vsq, vm, vr_):
        a(f"""
        v_mul_f32 {vsum}, {hex(f2u(1/512))}, {vsum}
        v_mul_f32 {vsq}, {hex(f2u(1/512))}, {vsq}
        v_fma_f32 {vsq}, -{vsum}, {vsum}, {vsq}
        v_max_f32 {vsq}, 0, {vsq}
        """)
        rnd1(vm, vsum); rnd1(vsq, vsq)
        a(f"v_add_f32 {vsq}, {hex(f2u(1e-5))}, {vsq}")
        rnd1(vsq, vsq)
        a(f"v_sqrt_f32 {vsq}, {vsq}\ns_nop 0")
        rnd1(vsq, vsq)
        a(f"v_rcp_f32 {vr_}, {vsq}\ns_nop 0")
    def ln_apply(lo, hi, vm, vr_, dst):
        a(f"""
        v_sub_f32 {lo}, {lo}, {vm}
        v_sub_f32 {hi}, {hi}, {vm}
        v_cvt_pk_bf16_f32 {dst}, {lo}, {hi}
        v_lshlrev_b32 {lo}, 16, {dst}
        v_and_b32 {hi}, 0xffff0000, {dst}
        v_mul_f32 {lo}, {lo}, {vr_}
        v_mul_f32 {hi}, {hi}, {vr_}
        v_cvt_pk_bf16_f32 {dst}, {lo}, {hi}
        """)

    a(f"""
    s_cmp_ge_u32 s2, 256
    s_cbranch_scc1 L_end
    s_load_dwordx16 s[16:31], s[0:1], 0
    s_load_dwordx8 s[32:39], s[0:1], 64
    """)
    if stamps: a("v_mov_b32 v62, 0\nv_mov_b32 v63, 0\ns_memrealtime s[94:95]")
    a(f"""
    v_lshrrev_b32 {t[0]}, 6, v0
    v_and_b32 {vL}, 63, v0
    s_and_b32 {sX}, s2, 7
    v_readfirstlane_b32 {sWV}, {t[0]}
    s_lshr_b32 {sSLOT}, s2, 3
    s_lshr_b32 {sB}, {sSLOT}, 2
    s_and_b32 {sS}, {sSLOT}, 3
    v_and_b32 {vN}, 15, {vL}
    v_lshrrev_b32 {vG}, 4, {vL}
    v_lshlrev_b32 {vL16}, 4, {vL}
    s_mov_b32 {sFF}, 0xff
    v_bfe_u32 {t[0]}, {vN}, 1, 1
    v_lshlrev_b32 {t[0]}, 10, {t[0]}
    v_lshrrev_b32 {t[1]}, 2, {vN}
    v_lshl_add_u32 {t[0]}, {t[1]}, 8, {t[0]}
    v_and_b32 {t[1]}, 1, {vN}
    v_lshl_add_u32 {t[0]}, {t[1]}, 6, {t[0]}
    v_lshl_add_u32 {vKoff}, {vG}, 4, {t[0]}
    s_lshl_b32 {sTMP[0]}, {sB}, 24
    s_lshl_b32 {sTMP[1]}, {sX}, 21
    s_add_u32 {sTMP[0]}, {sTMP[0]}, {sTMP[1]}
    s_lshl_b32 {sTMP[1]}, {sS}, 17
    s_add_u32 {sTMP[0]}, {sTMP[0]}, {sTMP[1]}
    s_add_u32 {sTMP[0]}, {sTMP[0]}, {6144*256}
    s_lshl_b32 {sTMP[1]}, {sX}, 2
    s_xor_b32 {sTMP[1]}, {sTMP[1]}, {sSLOT}
    s_lshl_b32 {sTMP[2]}, {sWV}, 2
    s_xor_b32 {sTMP[1]}, {sTMP[1]}, {sTMP[2]}
    """)
    for bt in range(4):
        a(f"s_xor_b32 {sTMP[2]}, {sTMP[1]}, {bt}\ns_lshl_b32 {sTMP[2]}, {sTMP[2]}, 12\ns_add_u32 {sKV[bt]}, {sTMP[0]}, {sTMP[2]}")
    a("s_waitcnt lgkmcnt(0)")
    srd(rK, "k", 0x8000000); srd(rV, "v", 0x8000000); srd(rWS, "ws", 0x20000000)
    srd(rA, "x", 8192); srd(rB, "wq", 0x400000)
    if stamps: a("v_writelane_b32 v62, s94, 0\nv_writelane_b32 v63, s95, 0")
    a(f"v_mov_b32 {t[0]}, 0\nbuffer_load_dword {vT[0]}, {t[0]}, {rWS}, 0 offen sc1")
    def settag():
        a(f"""
        v_readfirstlane_b32 {sT}, {vT[0]}
        s_nop 3
        s_add_u32 {sT}, {sT}, 0x9E3779B1
        s_and_b32 {sTMP[0]}, {sT}, 0xff
        v_mov_b32 {vT[0]}, {sTMP[0]}
        s_bfe_u32 {sTMP[0]}, {sT}, 0x80008
        v_mov_b32 {vT[1]}, {sTMP[0]}
        s_bfe_u32 {sTMP[0]}, {sT}, 0x80010
        v_mov_b32 {vT[2]}, {sTMP[0]}
        s_lshr_b32 {sTMP[0]}, {sT}, 24
        v_mov_b32 {vT[3]}, {sTMP[0]}
        """)
    a(f"s_cmp_lg_u32 {sWV}, 0\ns_cbranch_scc1 L_kv")
    XS = 128
    XO = 160
    WA = 64
    QD = 176
    a(f"""
    v_and_b32 {t[0]}, 7, {vN}
    v_lshlrev_b32 {t[0]}, 10, {t[0]}
    v_lshl_add_u32 {t[0]}, {vG}, 4, {t[0]}          ; bb*1024 + g*16
    v_lshrrev_b32 {t[1]}, 3, {vN}
    v_lshl_add_u32 {t[1]}, {t[1]}, 6, {t[0]}        ; + hf*64
    s_lshl_b32 {sTMP[0]}, {sS}, 8                   ; kq*256
    """)
    for i in range(8): a(f"buffer_load_dwordx4 {vr(XS+4*i)}, {t[1]}, {rA}, 0 offen offset:{128*i}")
    for i in range(4): a(f"buffer_load_dwordx4 {vr(XO+4*i)}, {t[0]}, {rA}, {sTMP[0]} offen offset:{64*i}")
    a(f"""
    v_lshrrev_b32 {t[2]}, 3, {vL}
    v_lshlrev_b32 {t[2]}, 13, {t[2]}
    v_and_b32 {t[3]}, 7, {vL}
    v_lshl_add_u32 {t[2]}, {t[3]}, 4, {t[2]}
    s_lshl_b32 {sTMP[1]}, {sS}, 20                  ; kq*128*8192
    s_lshl_b32 {sTMP[2]}, {sX}, 10
    s_add_u32 {sTMP[1]}, {sTMP[1]}, {sTMP[2]}
    s_lshl_b32 {sTMP[2]}, {sB}, 7                   ; lg*128
    s_add_u32 {sTMP[1]}, {sTMP[1]}, {sTMP[2]}
    """)
    for i in range(16):
        a(f"s_mov_b32 m0, {L_WQ + 1024*i}\ns_add_u32 {sTMP[2]}, {sTMP[1]}, {65536*i}\nbuffer_load_dwordx4 {t[2]}, {rB}, {sTMP[2]} offen {wpol} lds")
    a("s_waitcnt vmcnt(16)")
    settag()
    a(f"s_mov_b32 {sC[0]}, 0x3f803f80\nv_mov_b32 {t[4]}, 0\nv_mov_b32 {t[5]}, 0\nv_mov_b32 {t[6]}, 0\nv_mov_b32 {t[7]}, 0")
    for i in range(32):
        a(f"v_dot2_f32_bf16 {t[4+2*(i&1)]}, v{XS+i}, {sC[0]}, {t[4+2*(i&1)]}")
        a(f"v_dot2_f32_bf16 {t[5+2*(i&1)]}, v{XS+i}, v{XS+i}, {t[5+2*(i&1)]}")
    a(f"s_nop 2\nv_add_f32 {t[4]}, {t[4]}, {t[6]}\nv_add_f32 {t[5]}, {t[5]}, {t[7]}")
    allreduce([t[4], t[5]], [8, 16, 32])
    ln_scalars(t[4], t[5], t[6], t[7])
    for i in range(16):
        a(f"v_lshlrev_b32 {t[8]}, 16, v{XO+i}\nv_and_b32 {t[9]}, 0xffff0000, v{XO+i}")
        ln_apply(t[8], t[9], t[6], t[7], f"v{XO+i}")
    a(f"""
    v_lshrrev_b32 {t[8]}, 2, {vN}
    v_lshl_add_u32 {t[8]}, {vG}, 3, {t[8]}
    v_lshlrev_b32 {t[8]}, 7, {t[8]}
    v_and_b32 {t[9]}, 3, {vN}
    v_lshl_add_u32 {t[8]}, {t[9]}, 3, {t[8]}
    s_waitcnt vmcnt(0)
    """)
    for mt in range(4):
        for ks in range(4):
            for hf in range(2):
                r = WA + (mt * 4 + ks) * 4 + 2 * hf
                a(f"ds_read_b64_tr_b16 v[{r}:{r+1}], {t[8]} offset:{L_WQ + ks*4096 + hf*512 + mt*32}")
        if mt == 1: a("s_waitcnt lgkmcnt(0)")
    a("s_waitcnt lgkmcnt(0)")
    for ks in range(4):
        for mt in range(4):
            c = "0" if ks == 0 else vr(QD + 4 * mt)
            a(f"v_mfma_f32_16x16x32_bf16 {vr(QD+4*mt)}, {vr(WA+(mt*4+ks)*4)}, {vr(XO+4*ks)}, {c}")
    a(f"""
    v_and_b32 {t[0]}, 7, {vN}
    v_lshlrev_b32 {t[0]}, 13, {t[0]}
    v_lshrrev_b32 {t[1]}, 3, {vN}
    v_lshl_add_u32 {t[0]}, {t[1]}, 6, {t[0]}
    v_lshl_add_u32 {t[0]}, {vG}, 4, {t[0]}
    v_cmp_lt_u32 vcc, 7, {vN}
    s_lshl_b32 {sTMP[0]}, {sX}, 16
    s_lshl_b32 {sTMP[1]}, {sS}, 11
    s_add_u32 {sTMP[0]}, {sTMP[0]}, {sTMP[1]}
    s_lshl_b32 {sTMP[1]}, {sB}, 8
    s_add_u32 {sTMP[0]}, {sTMP[0]}, {sTMP[1]}
    s_add_u32 {sTMP[0]}, {sTMP[0]}, {QP}
    """)
    for j in range(2):
        for i in range(4): a(f"v_cndmask_b32 v{48+4*j+i}, v{QD+8*j+i}, v{QD+8*j+4+i}, vcc")
        tagpack(48 + 4 * j, 48 + 4 * j)
        a(f"buffer_store_dwordx4 {vr(48+4*j)}, {t[0]}, {rWS}, {sTMP[0]} offen offset:{128*j} sc0 sc1")
    stamp(1)
    a("L_kv:")
    for bt in range(4):
        for h in range(2):
            for lh in range(2):
                r = KR + ((2 * bt + h) * 2 + lh) * 4
                a(f"buffer_load_dwordx4 {vr(r)}, {vKoff}, {rK}, {sKV[bt]} offen offset:{h*2048 + lh*128} {kvpol}")
    for bt in range(4):
        for jj in range(4):
            r = VR + (bt * 4 + jj) * 4
            a(f"buffer_load_dwordx4 {vr(r)}, {vL16}, {rV}, {sKV[bt]} offen offset:{jj*1024} {kvpol}")
    a(f"s_cmp_eq_u32 {sWV}, 0\ns_cbranch_scc1 L_tagdone\ns_waitcnt vmcnt(32)")
    settag()
    a("L_tagdone:")
    stamp(2)
    a(f"s_cmp_lg_u32 {sWV}, 1\ns_cbranch_scc1 L_qdone")
    a(f"""
    s_lshl_b32 {sTMP[0]}, {sX}, 3
    s_add_u32 {sTMP[0]}, {sTMP[0]}, {sB}
    s_lshl_b32 {sTMP[0]}, {sTMP[0]}, 13
    s_add_u32 {sTMP[0]}, {sTMP[0]}, {QP}
    s_add_u32 {sTMP[1]}, {sTMP[0]}, 4096
    """)
    G = DS_
    loads = [f"buffer_load_dwordx4 {vr(G+4*(2*kq+j))}, {vL16}, {rWS}, {sTMP[kq>>1]} offen offset:{(kq&1)*2048 + j*1024} sc1" for kq in range(4) for j in range(2)]
    poll(loads, [G + 4 * i for i in range(8)])
    for j in range(2):
        for i in range(4):
            a(f"v_add_f32 v{G+4*j+i}, v{G+4*j+i}, v{G+8+4*j+i}\nv_add_f32 v{G+16+4*j+i}, v{G+16+4*j+i}, v{G+24+4*j+i}")
        for i in range(4): a(f"v_add_f32 v{G+4*j+i}, v{G+4*j+i}, v{G+16+4*j+i}")
        a(f"v_cvt_pk_bf16_f32 {t[2*j]}, v{G+4*j}, v{G+4*j+1}\nv_cvt_pk_bf16_f32 {t[2*j+1]}, v{G+4*j+2}, v{G+4*j+3}")
    a(f"""
    v_lshlrev_b32 {t[4]}, 3, {vL}
    ds_write_b64 {t[4]}, v[10:11] offset:{L_Q}
    ds_write_b64 {t[4]}, v[12:13] offset:{L_Q+512}
    s_waitcnt lgkmcnt(0)
    """)
    stamp(3)
    a("L_qdone:\ns_barrier")
    stamp(4)
    a(f"""
    v_and_b32 {t[0]}, 3, {vN}
    v_lshlrev_b32 {t[0]}, 8, {t[0]}
    v_bfe_u32 {t[1]}, {vN}, 2, 1
    v_lshl_add_u32 {t[0]}, {t[1]}, 6, {t[0]}
    v_lshl_add_u32 {t[0]}, {vG}, 4, {t[0]}
    ds_read_b128 {vr(QB)}, {t[0]} offset:{L_Q}
    ds_read_b128 {vr(QB+4)}, {t[0]} offset:{L_Q+128}
    v_cmp_eq_u32 {sM1}, 1, {t[1]}
    s_mov_b32 {sC[0]}, {hex(f2u(128**-0.5))}
    s_mov_b32 {sC[1]}, {hex(f2u(1.4426950408889634))}
    s_waitcnt vmcnt(16) lgkmcnt(0)
    """)
    for tt in range(8): a(f"v_mfma_f32_16x16x32_bf16 {vr(DS_+4*tt)}, {vr(KR+8*tt)}, {vr(QB)}, 0")
    for tt in range(8): a(f"v_mfma_f32_16x16x32_bf16 {vr(DS_+4*tt)}, {vr(KR+8*tt+4)}, {vr(QB+4)}, {vr(DS_+4*tt)}")
    a("s_nop 0")
    SC = KR
    for tt in range(8):
        for e in range(2):
            a(f"v_cndmask_b32 v{DS_+4*tt+2*e}, v{DS_+4*tt+2*e}, v{DS_+4*tt+2*e+1}, {sM1}")
    for tt in range(8):
        for e in range(2):
            r = DS_ + 4 * tt + 2 * e
            a(f"v_add_f32_dpp v{SC+2*tt+e}, v{r}, v{r} row_ror:4 row_mask:0xf bank_mask:0xf")
    for tt in range(8):
        lo, hi = f"v{SC+2*tt}", f"v{SC+2*tt+1}"
        a(f"""
        v_cvt_pk_bf16_f32 {t[2]}, {lo}, {hi}
        v_lshlrev_b32 {lo}, 16, {t[2]}
        v_and_b32 {hi}, 0xffff0000, {t[2]}
        v_mul_f32 {lo}, {sC[0]}, {lo}
        v_mul_f32 {hi}, {sC[0]}, {hi}
        v_cvt_pk_bf16_f32 {t[2]}, {lo}, {hi}
        v_lshlrev_b32 {lo}, 16, {t[2]}
        v_and_b32 {hi}, 0xffff0000, {t[2]}
        """)
    a(f"v_max3_f32 {t[3]}, v{SC}, v{SC+1}, v{SC+2}")
    for i in range(3, 15, 2): a(f"v_max3_f32 {t[3]}, {t[3]}, v{SC+i}, v{SC+i+1}")
    a(f"v_max_f32 {t[3]}, {t[3]}, v{SC+15}")
    allreduce([t[3]], [16, 32], op="v_max_f32")
    a(f"""
    v_and_b32 {t[4]}, 3, {vN}
    v_lshlrev_b32 {t[4]}, 5, {t[4]}
    s_lshl_b32 {sTMP[0]}, {sWV}, 2
    v_add_u32 {t[5]}, {sTMP[0]}, {t[4]}
    s_mov_b64 exec, 0xf
    ds_write_b32 {t[5]}, {t[3]} offset:{L_SM}
    s_mov_b64 exec, -1
    s_waitcnt lgkmcnt(0)
    s_barrier
    ds_read_b128 v[80:83], {t[4]} offset:{L_SM}
    ds_read_b128 v[84:87], {t[4]} offset:{L_SM+16}
    s_waitcnt lgkmcnt(0)
    v_max3_f32 {t[3]}, v80, v81, v82
    v_max3_f32 {t[3]}, {t[3]}, v83, v84
    v_max3_f32 {t[3]}, {t[3]}, v85, v86
    v_max_f32 {t[3]}, {t[3]}, v87
    """)
    for i in range(16): a(f"v_sub_f32 v{SC+i}, v{SC+i}, {t[3]}")
    for i in range(16): a(f"v_mul_f32 v{SC+i}, {sC[1]}, v{SC+i}")
    for i in range(16): a(f"v_exp_f32 v{SC+i}, v{SC+i}")
    a(f"s_nop 0\nv_add_f32 {t[6]}, v{SC}, v{SC+1}\nv_add_f32 {t[7]}, v{SC+2}, v{SC+3}")
    for i in range(4, 16, 2): a(f"v_add_f32 {t[6]}, {t[6]}, v{SC+i}\nv_add_f32 {t[7]}, {t[7]}, v{SC+i+1}")
    a(f"v_add_f32 {t[6]}, {t[6]}, {t[7]}")
    allreduce([t[6]], [16, 32])
    a(f"""
    s_mov_b64 exec, 0xf
    ds_write_b32 {t[5]}, {t[6]} offset:{L_SL}
    s_mov_b64 exec, -1
    """)
    PA = 80
    for tt in range(8): a(f"v_cvt_pk_bf16_f32 v{PA+tt}, v{SC+2*tt}, v{SC+2*tt+1}")
    a(f"v_lshrrev_b32 {t[7]}, 2, {vN}")
    for gg in range(4):
        a(f"v_cmp_eq_u32 vcc, {gg}, {t[7]}\ns_nop 1")
        for i in range(8): a(f"v_cndmask_b32 v{PM+8*gg+i}, 0, v{PA+i}, vcc")
    a("s_waitcnt lgkmcnt(0)\ns_barrier")
    a(f"""
    s_cmp_lg_u32 {sWV}, 2
    s_cbranch_scc1 L_nostat
    ds_read_b128 v[88:91], {t[4]} offset:{L_SL}
    ds_read_b128 v[92:95], {t[4]} offset:{L_SL+16}
    s_lshl_b32 {sTMP[0]}, {sX}, 5
    s_add_u32 {sTMP[0]}, {sTMP[0]}, {sSLOT}
    s_lshl_b32 {sTMP[0]}, {sTMP[0]}, 6
    s_add_u32 {sTMP[0]}, {sTMP[0]}, {ST}
    s_waitcnt lgkmcnt(0)
    v_add_f32 v88, v88, v89
    v_add_f32 v90, v90, v91
    v_add_f32 v92, v92, v93
    v_add_f32 v94, v94, v95
    v_add_f32 v88, v88, v90
    v_add_f32 v92, v92, v94
    v_add_f32 v49, v88, v92
    v_mov_b32 v48, {t[3]}
    v_mov_b32 v50, 0
    v_mov_b32 v51, {sT}
    s_mov_b64 exec, 0xf
    buffer_store_dwordx4 v[48:51], {vL16}, {rWS}, {sTMP[0]} offen sc0 sc1
    s_mov_b64 exec, -1
    L_nostat:
    """)
    stamp(5)
    a(f"s_mov_b32 {sC[2]}, 0x05040100\ns_mov_b32 {sC[3]}, 0x07060302")
    VT = [96, 64]
    for u in range(2):
        a(f"s_waitcnt vmcnt({8 if u == 0 else 0})")
        for i in range(8):
            for jj in range(4):
                hi = VR + (8 * u + 2 * jj + 1) * 4 + (i >> 1); lo = VR + (8 * u + 2 * jj) * 4 + (i >> 1)
                a(f"v_perm_b32 v{VT[u]+4*i+jj}, v{hi}, v{lo}, {sC[2 + (i & 1)]}")
        a("s_nop 0")
        for i in range(8):
            e = i & 1; gg = i >> 1
            c = "0" if (u == 0 and gg == 0) else vr(ACC + 4 * e)
            a(f"v_mfma_f32_16x16x32_bf16 {vr(ACC+4*e)}, {vr(PM+8*gg+4*u)}, {vr(VT[u]+4*i)}, {c}")
    a(f"""
    s_lshl_b32 {sTMP[0]}, {sWV}, 11
    v_add_u32 {t[0]}, {sTMP[0]}, {vL16}
    s_nop 5
    ds_write_b128 {t[0]}, {vr(ACC)} offset:{L_OR}
    ds_write_b128 {t[0]}, {vr(ACC+4)} offset:{L_OR+1024}
    """)
    stamp(6)
    srd(rA, "wo", 0x400000)
    a(f"""
    s_cmp_ge_u32 {sSLOT}, 16
    s_cbranch_scc1 L_nowdma
    s_cmp_ge_u32 {sWV}, 4
    s_cbranch_scc1 L_nowdma
    v_bfe_u32 {t[1]}, {vL}, 3, 2
    v_lshlrev_b32 {t[1]}, 17, {t[1]}
    v_lshrrev_b32 {t[2]}, 5, {vL}
    v_lshl_add_u32 {t[1]}, {t[2]}, 13, {t[1]}
    v_and_b32 {t[2]}, 7, {vL}
    v_lshl_add_u32 {t[1]}, {t[2]}, 4, {t[1]}
    s_lshl_b32 {sTMP[0]}, {sX}, 9
    s_lshr_b32 {sTMP[1]}, {sSLOT}, 3
    s_add_u32 {sTMP[0]}, {sTMP[0]}, {sTMP[1]}
    s_lshl_b32 {sTMP[0]}, {sTMP[0]}, 10
    s_and_b32 {sTMP[1]}, {sSLOT}, 7
    s_lshl_b32 {sTMP[1]}, {sTMP[1]}, 7
    s_add_u32 {sTMP[0]}, {sTMP[0]}, {sTMP[1]}
    s_lshl_b32 {sTMP[1]}, {sWV}, 11
    s_add_u32 {sTMP[0]}, {sTMP[0]}, {sTMP[1]}
    s_lshl_b32 {sTMP[2]}, {sWV}, 13
    s_add_u32 {sTMP[2]}, {sTMP[2]}, {L_W}
    """)
    for i in range(8):
        a(f"s_add_u32 m0, {sTMP[2]}, {1024*i}\ns_add_u32 {sTMP[1]}, {sTMP[0]}, {16384*i}\nbuffer_load_dwordx4 {t[1]}, {rA}, {sTMP[1]} offen {wpol} lds")
    a("L_nowdma:\ns_waitcnt lgkmcnt(0)\ns_barrier")
    stamp(7)
    a(f"""
    s_sub_u32 {sTMP[3]}, {sWV}, 4
    s_cmp_ge_u32 {sTMP[3]}, 2
    s_cbranch_scc1 L_noored
    s_lshl_b32 {sTMP[3]}, {sTMP[3]}, 10
    v_add_u32 {t[0]}, {sTMP[3]}, {vL16}
    """)
    for w in range(8): a(f"ds_read_b128 {vr(64+4*w)}, {t[0]} offset:{L_OR + 2048*w}")
    a(f"""
    s_lshl_b32 {sTMP[0]}, {sX}, 5
    s_add_u32 {sTMP[0]}, {sTMP[0]}, {sSLOT}
    s_lshl_b32 {sTMP[0]}, {sTMP[0]}, 11
    s_add_u32 {sTMP[0]}, {sTMP[0]}, {OP}
    s_waitcnt lgkmcnt(4)
    v_pk_add_f32 v[64:65], v[64:65], v[68:69]
    v_pk_add_f32 v[66:67], v[66:67], v[70:71]
    v_pk_add_f32 v[72:73], v[72:73], v[76:77]
    v_pk_add_f32 v[74:75], v[74:75], v[78:79]
    v_pk_add_f32 v[64:65], v[64:65], v[72:73]
    v_pk_add_f32 v[66:67], v[66:67], v[74:75]
    s_waitcnt lgkmcnt(0)
    v_pk_add_f32 v[80:81], v[80:81], v[84:85]
    v_pk_add_f32 v[82:83], v[82:83], v[86:87]
    v_pk_add_f32 v[88:89], v[88:89], v[92:93]
    v_pk_add_f32 v[90:91], v[90:91], v[94:95]
    v_pk_add_f32 v[80:81], v[80:81], v[88:89]
    v_pk_add_f32 v[82:83], v[82:83], v[90:91]
    v_pk_add_f32 v[64:65], v[64:65], v[80:81]
    v_pk_add_f32 v[66:67], v[66:67], v[82:83]
    """)
    tagpack(48, 64)
    a(f"buffer_store_dwordx4 v[48:51], {t[0]}, {rWS}, {sTMP[0]} offen sc0 sc1\nL_noored:")
    stamp(8)
    a(f"""
    s_cmp_lt_u32 {sSLOT}, 16
    s_cbranch_scc1 L_W
    s_cmp_lt_u32 {sSLOT}, 24
    s_cbranch_scc1 L_H
    s_cmp_lt_u32 {sX}, 7
    s_cbranch_scc1 L_F
    s_branch L_fin
    """)
    def tr_addr(dst, rowshift):
        a(f"""
        v_lshrrev_b32 {dst}, 2, {vN}
        v_lshl_add_u32 {dst}, {vG}, 3, {dst}
        v_lshlrev_b32 {dst}, {rowshift}, {dst}
        v_and_b32 {t[19]}, 3, {vN}
        v_lshl_add_u32 {dst}, {t[19]}, 3, {dst}
        """)
    a("L_W:")
    a(f"s_cmp_ge_u32 {sWV}, 4\ns_cbranch_scc1 L_W1\ns_waitcnt vmcnt(0)\nL_W1:\ns_barrier")
    WA2 = 128
    a(f"s_cmp_ge_u32 {sWV}, 4\ns_cbranch_scc1 L_W2")
    tr_addr(t[0], 7)
    a(f"s_lshl_b32 {sTMP[0]}, {sWV}, 5\nv_add_u32 {t[0]}, {sTMP[0]}, {t[0]}")
    for ks in range(8):
        for hf in range(2):
            r = WA2 + 4 * ks + 2 * hf
            a(f"ds_read_b64_tr_b16 v[{r}:{r+1}], {t[0]} offset:{L_W + ks*4096 + hf*512}")
        if ks == 5: a("s_waitcnt lgkmcnt(0)")
    a("L_W2:")
    a(f"""
    s_lshl_b32 {sTMP[0]}, {sX}, 3
    s_add_u32 {sTMP[0]}, {sTMP[0]}, {sWV}
    s_lshl_b32 {sTMP[1]}, {sTMP[0]}, 8
    s_add_u32 {sTMP[1]}, {sTMP[1]}, {ST}
    v_lshlrev_b32 {t[1]}, 4, {vN}
    s_lshl_b32 {sTMP[2]}, {sTMP[0]}, 13
    s_lshr_b32 {sTMP[3]}, {sSLOT}, 3
    s_lshl_b32 {sTMP[3]}, {sTMP[3]}, 10
    s_add_u32 {sTMP[2]}, {sTMP[2]}, {sTMP[3]}
    s_add_u32 {sTMP[2]}, {sTMP[2]}, {OP}
    s_add_u32 {sTMP[3]}, {sTMP[2]}, 4096
    """)
    poll([f"buffer_load_dwordx4 v[64:67], {t[1]}, {rWS}, {sTMP[1]} offen sc1"], [], fulltag=[64])
    a(f"""
    s_nop 1
    v_max_f32_dpp {t[2]}, v64, v64 row_ror:4 row_mask:0xf bank_mask:0xf
    s_nop 1
    v_max_f32_dpp {t[2]}, {t[2]}, {t[2]} row_ror:8 row_mask:0xf bank_mask:0xf
    v_sub_f32 {t[3]}, v64, {t[2]}
    v_mul_f32 {t[3]}, {sC[1]}, {t[3]}
    v_exp_f32 {t[3]}, {t[3]}
    s_nop 0
    v_mul_f32 {t[4]}, {t[3]}, v65
    s_nop 1
    v_add_f32_dpp {t[5]}, {t[4]}, {t[4]} row_ror:4 row_mask:0xf bank_mask:0xf
    s_nop 1
    v_add_f32_dpp {t[5]}, {t[5]}, {t[5]} row_ror:8 row_mask:0xf bank_mask:0xf
    v_rcp_f32 {t[5]}, {t[5]}
    s_nop 0
    v_mul_f32 {t[3]}, {t[3]}, {t[5]}
    s_nop 0
    """)
    for i in range(16): a(f"v_readlane_b32 s{sW+i}, {t[3]}, {i}")
    a(f"s_mul_i32 {sTMP[4]}, {sWV}, 528\nv_lshlrev_b32 {t[6]}, 3, {vL}\nv_add_u32 {t[6]}, {sTMP[4]}, {t[6]}")
    a(f"""
    v_and_b32 {t[7]}, 7, {vN}
    v_mul_u32_u24 {t[7]}, 528, {t[7]}
    v_lshl_add_u32 {t[7]}, {vG}, 4, {t[7]}
    """)
    stamp(9)
    loads = [f"buffer_load_dwordx4 {vr(64+4*s)}, {vL16}, {rWS}, {sTMP[2 + (s>>1)]} offen offset:{(s&1)*2048} sc1" for s in range(4)]
    poll(loads, [64, 68, 72, 76])
    stamp(10)
    for r in range(4): a(f"v_mul_f32 v{64+r}, s{sW+r}, v{64+r}")
    for s in range(1, 4):
        for r in range(4): a(f"v_fmac_f32 v{64+r}, s{sW+4*s+r}, v{64+4*s+r}")
    a(f"""
    v_cvt_pk_bf16_f32 v68, v64, v65
    v_cvt_pk_bf16_f32 v69, v66, v67
    ds_write_b64 {t[6]}, v[68:69] offset:{L_A}
    s_waitcnt lgkmcnt(0)
    s_barrier
    s_cmp_ge_u32 {sWV}, 4
    s_cbranch_scc1 L_fin
    """)
    for ks in range(8): a(f"ds_read_b128 {vr(64+4*ks)}, {t[7]} offset:{L_A + 64*ks}")
    a(f"""
    v_lshlrev_b32 {t[8]}, 15, {vN}
    v_lshl_add_u32 {t[8]}, {vG}, 4, {t[8]}
    s_and_b32 {sTMP[0]}, {sSLOT}, 7
    s_lshl_b32 {sTMP[0]}, {sTMP[0]}, 4
    s_lshl_b32 {sTMP[1]}, {sX}, 1
    s_add_u32 {sTMP[0]}, {sTMP[0]}, {sTMP[1]}
    s_lshr_b32 {sTMP[1]}, {sSLOT}, 3
    s_add_u32 {sTMP[0]}, {sTMP[0]}, {sTMP[1]}
    s_lshl_b32 {sTMP[0]}, {sTMP[0]}, 8
    s_lshl_b32 {sTMP[1]}, {sWV}, 6
    s_add_u32 {sTMP[0]}, {sTMP[0]}, {sTMP[1]}
    s_add_u32 {sTMP[0]}, {sTMP[0]}, {HP}
    """)
    for ks in range(8):
        a(f"s_waitcnt lgkmcnt({7-ks})")
        c = "0" if ks == 0 else vr(ACC)
        a(f"v_mfma_f32_16x16x32_bf16 {vr(ACC)}, {vr(WA2+4*ks)}, {vr(64+4*ks)}, {c}")
    a("s_mov_b32 exec_lo, 0x00ff00ff\ns_mov_b32 exec_hi, 0x00ff00ff\ns_nop 5")
    tagpack(48, ACC)
    a(f"buffer_store_dwordx4 v[48:51], {t[8]}, {rWS}, {sTMP[0]} offen sc0 sc1\ns_mov_b64 exec, -1")
    stamp(11)
    a("s_branch L_fin")
    a("L_H:")
    srd(rA, "x", 8192); srd(rB, "out", 8192)
    a(f"""
    s_cmp_ge_u32 {sWV}, 2
    s_cbranch_scc1 L_fin
    s_sub_u32 {sTMP[5]}, {sSLOT}, 16              ; cH
    s_lshl_b32 {sTMP[0]}, {sX}, 10
    s_lshl_b32 {sTMP[1]}, {sTMP[5]}, 7
    s_add_u32 {sTMP[4]}, {sTMP[0]}, {sTMP[1]}
    v_lshlrev_b32 {t[0]}, 3, {vN}
    buffer_load_dwordx2 v[60:61], {t[0]}, {rA}, {sTMP[4]} offen
    s_lshl_b32 {sTMP[0]}, {sX}, 3
    s_add_u32 {sTMP[0]}, {sTMP[0]}, {sTMP[5]}
    s_lshl_b32 {sTMP[1]}, {sTMP[0]}, 12
    s_add_u32 {sTMP[1]}, {sTMP[1]}, {HP}
    s_lshl_b32 {sTMP[2]}, {sTMP[0]}, 8
    s_add_u32 {sTMP[2]}, {sTMP[2]}, {HH}
    s_lshl_b32 {sTMP[3]}, {sTMP[0]}, 1
    s_add_u32 {sTMP[3]}, {sTMP[3]}, {sWV}
    s_mul_i32 {sTMP[3]}, {sTMP[3]}, {56*128}
    s_add_u32 {sTMP[3]}, {sTMP[3]}, {DP}
    s_add_u32 {sTMP[0]}, {sTMP[3]}, 4096
    """)
    loads = [f"buffer_load_dwordx4 {vr(64+4*i)}, {vL16}, {rWS}, {sTMP[1]} offen offset:{1024*i} sc1" for i in range(4)]
    poll(loads, [64, 68, 72, 76], sleep=4)
    stamp(9)
    a("""
    v_pk_add_f32 v[64:65], v[64:65], v[68:69]
    v_pk_add_f32 v[66:67], v[66:67], v[70:71]
    v_pk_add_f32 v[72:73], v[72:73], v[76:77]
    v_pk_add_f32 v[74:75], v[74:75], v[78:79]
    v_pk_add_f32 v[64:65], v[64:65], v[72:73]
    v_pk_add_f32 v[66:67], v[66:67], v[74:75]
    """)
    allreduce(["v64", "v65", "v66", "v67"], [16, 32])
    a(f"""
    v_cvt_pk_bf16_f32 v68, v64, v65
    v_cvt_pk_bf16_f32 v69, v66, v67
    v_lshlrev_b32 v64, 16, v68
    v_and_b32 v65, 0xffff0000, v68
    v_lshlrev_b32 v66, 16, v69
    v_and_b32 v67, 0xffff0000, v69
    v_lshlrev_b32 v70, 16, v60
    v_and_b32 v71, 0xffff0000, v60
    v_lshlrev_b32 v72, 16, v61
    v_and_b32 v73, 0xffff0000, v61
    v_pk_add_f32 v[64:65], v[64:65], v[70:71]
    v_pk_add_f32 v[66:67], v[66:67], v[72:73]
    v_cvt_pk_bf16_f32 v68, v64, v65
    v_cvt_pk_bf16_f32 v69, v66, v67
    v_lshlrev_b32 v56, 16, v68
    v_and_b32 v57, 0xffff0000, v68
    v_lshlrev_b32 v58, 16, v69
    v_and_b32 v59, 0xffff0000, v69
    s_cmp_lg_u32 {sWV}, 0
    s_cbranch_scc1 L_H1
    """)
    tagpack(48, 56)
    a(f"""
    s_mov_b64 exec, 0xffff
    buffer_store_dwordx4 v[48:51], {vL16}, {rWS}, {sTMP[2]} offen sc0 sc1
    s_mov_b64 exec, -1
    L_H1:
    """)
    stamp(10)
    loads = [f"buffer_load_dwordx4 {vr(64+4*i)}, {vL16}, {rWS}, {sTMP[3] if i < 4 else sTMP[0]} offen offset:{1024*(i&3)} sc1" for i in range(7)]
    a("s_sleep 20")
    poll(loads, [64 + 4 * i for i in range(7)], sleep=4)
    stamp(11)
    a("""
    v_pk_add_f32 v[64:65], v[64:65], v[68:69]
    v_pk_add_f32 v[66:67], v[66:67], v[70:71]
    v_pk_add_f32 v[72:73], v[72:73], v[76:77]
    v_pk_add_f32 v[74:75], v[74:75], v[78:79]
    v_pk_add_f32 v[80:81], v[80:81], v[84:85]
    v_pk_add_f32 v[82:83], v[82:83], v[86:87]
    v_pk_add_f32 v[64:65], v[64:65], v[72:73]
    v_pk_add_f32 v[66:67], v[66:67], v[74:75]
    v_pk_add_f32 v[80:81], v[80:81], v[88:89]
    v_pk_add_f32 v[82:83], v[82:83], v[90:91]
    v_pk_add_f32 v[64:65], v[64:65], v[80:81]
    v_pk_add_f32 v[66:67], v[66:67], v[82:83]
    """)
    allreduce(["v64", "v65", "v66", "v67"], [8, 16, 32])
    a(f"""
    v_cvt_pk_bf16_f32 v68, v64, v65
    v_cvt_pk_bf16_f32 v69, v66, v67
    v_lshlrev_b32 v64, 16, v68
    v_and_b32 v65, 0xffff0000, v68
    v_lshlrev_b32 v66, 16, v69
    v_and_b32 v67, 0xffff0000, v69
    v_pk_add_f32 v[64:65], v[64:65], v[56:57]
    v_pk_add_f32 v[66:67], v[66:67], v[58:59]
    v_cvt_pk_bf16_f32 v68, v64, v65
    v_cvt_pk_bf16_f32 v69, v66, v67
    s_lshl_b32 {sTMP[0]}, {sWV}, 3
    s_lshl_b32 {sTMP[0]}, 0xff, {sTMP[0]}
    s_mov_b32 exec_lo, {sTMP[0]}
    s_mov_b32 exec_hi, 0
    buffer_store_dwordx2 v[68:69], {t[0]}, {rB}, {sTMP[4]} offen
    s_mov_b64 exec, -1
    s_cmp_lg_u32 s2, 128
    s_cbranch_scc1 L_fin
    s_cmp_lg_u32 {sWV}, 0
    s_cbranch_scc1 L_fin
    v_mov_b32 {t[1]}, 0
    v_mov_b32 {t[2]}, {sT}
    s_mov_b64 exec, 1
    buffer_store_dword {t[2]}, {t[1]}, {rWS}, 0 offen sc0 sc1
    s_mov_b64 exec, -1
    s_branch L_fin
    """)
    a("L_F:")
    srd(rA, "wg", 512*3584); srd(rB, "wu", 512*3584); srd(rK, "wd", 1792*1024)
    a(f"""
    s_lshl_b32 {sTMP[5]}, {sX}, 3
    s_add_u32 {sTMP[5]}, {sTMP[5]}, {sSLOT}
    s_sub_u32 {sTMP[5]}, {sTMP[5]}, 24            ; f
    v_lshrrev_b32 {t[0]}, 2, {vL}
    v_mul_u32_u24 {t[0]}, 3584, {t[0]}
    v_and_b32 {t[1]}, 3, {vL}
    v_lshl_add_u32 {t[0]}, {t[1]}, 4, {t[0]}
    s_lshl_b32 {sTMP[0]}, {sTMP[5]}, 6
    s_mul_i32 {sTMP[1]}, {sWV}, {4*57344}
    s_add_u32 {sTMP[0]}, {sTMP[0]}, {sTMP[1]}
    s_lshl_b32 {sTMP[2]}, {sWV}, 12
    """)
    for i in range(4):
        a(f"s_add_u32 m0, {sTMP[2]}, {L_G + 1024*i}\ns_add_u32 {sTMP[1]}, {sTMP[0]}, {57344*i}\nbuffer_load_dwordx4 {t[0]}, {rA}, {sTMP[1]} offen lds")
        a(f"s_add_u32 m0, {sTMP[2]}, {L_U + 1024*i}\ns_nop 0\nbuffer_load_dwordx4 {t[0]}, {rB}, {sTMP[1]} offen lds")
    a(f"""
    s_lshl_b32 {sTMP[0]}, {sTMP[5]}, 15
    s_add_u32 {sTMP[0]}, {sTMP[0]}, {sTMP[2]}
    s_mul_i32 {sTMP[3]}, {sWV}, {4*1056}
    """)
    for i in range(4):
        a(f"s_add_u32 m0, {sTMP[3]}, {L_D + 1056*i}\ns_add_u32 {sTMP[1]}, {sTMP[0]}, {1024*i}\nbuffer_load_dwordx4 {vL16}, {rK}, {sTMP[1]} offen {wpol} lds")
    a("s_waitcnt vmcnt(0)\ns_barrier")
    stamp(9)
    GA = 128
    DA = 192
    a(f"""
    v_lshrrev_b32 {t[2]}, 2, {vN}
    v_lshl_add_u32 {t[2]}, {vG}, 3, {t[2]}
    v_mul_u32_u24 {t[2]}, 1056, {t[2]}
    v_and_b32 {t[3]}, 3, {vN}
    v_lshl_add_u32 {t[2]}, {t[3]}, 3, {t[2]}
    s_lshl_b32 {sTMP[0]}, {sWV}, 7
    s_add_u32 {sTMP[0]}, {sTMP[0]}, {L_D}
    v_add_u32 {t[2]}, {sTMP[0]}, {t[2]}
    """)
    for mt in range(4):
        for hf in range(2):
            r = DA + 4 * mt + 2 * hf
            a(f"ds_read_b64_tr_b16 v[{r}:{r+1}], {t[2]} offset:{hf*4*1056 + mt*32}")
    a(f"s_waitcnt lgkmcnt(0)\ns_cmp_ge_u32 {sWV}, 4\ns_cbranch_scc1 L_F1")
    tr_addr(t[2], 6)
    a(f"""
    s_lshr_b32 {sTMP[0]}, {sWV}, 1
    s_lshl_b32 {sTMP[0]}, {sTMP[0]}, 15
    s_and_b32 {sTMP[1]}, {sWV}, 1
    s_lshl_b32 {sTMP[1]}, {sTMP[1]}, 5
    s_add_u32 {sTMP[0]}, {sTMP[0]}, {sTMP[1]}
    s_add_u32 {sTMP[0]}, {sTMP[0]}, {L_G}
    v_add_u32 {t[2]}, {sTMP[0]}, {t[2]}
    """)
    for ks in range(16):
        for hf in range(2):
            r = GA + 4 * ks + 2 * hf
            a(f"ds_read_b64_tr_b16 v[{r}:{r+1}], {t[2]} offset:{ks*2048 + hf*256}")
        if ks % 6 == 5: a("s_waitcnt lgkmcnt(0)")
    a("L_F1:")
    a(f"""
    s_lshl_b32 {sTMP[0]}, {sWV}, 11
    s_add_u32 {sTMP[0]}, {sTMP[0]}, {HH}
    s_mul_i32 {sTMP[4]}, {sWV}, 1040
    v_lshlrev_b32 {t[6]}, 3, {vL}
    v_add_u32 {t[6]}, {sTMP[4]}, {t[6]}
    v_and_b32 {t[8]}, 7, {vN}
    v_mul_u32_u24 {t[7]}, 1040, {t[8]}
    v_lshl_add_u32 {t[7]}, {vG}, 4, {t[7]}
    v_mul_u32_u24 {t[9]}, 80, {t[8]}              ; X row (b)
    v_lshl_add_u32 {t[10]}, {vG}, 4, {t[9]}
    v_lshl_add_u32 {t[9]}, {vG}, 3, {t[9]}
    s_lshr_b32 {sTMP[1]}, {sWV}, 1
    s_mul_i32 {sTMP[1]}, {sTMP[1]}, 640
    s_and_b32 {sTMP[2]}, {sWV}, 1
    s_lshl_b32 {sTMP[2]}, {sTMP[2]}, 5
    s_add_u32 {sTMP[1]}, {sTMP[1]}, {sTMP[2]}
    v_add_u32 {t[9]}, {sTMP[1]}, {t[9]}
    v_mul_u32_u24 {t[11]}, {16*56*128}, {t[8]}
    v_lshrrev_b32 {t[12]}, 3, {vN}
    v_lshl_add_u32 {t[11]}, {t[12]}, 6, {t[11]}
    v_lshl_add_u32 {t[11]}, {vG}, 4, {t[11]}
    s_mul_i32 {sTMP[1]}, {sWV}, {2*56*128}
    s_lshl_b32 {sTMP[2]}, {sTMP[5]}, 7
    s_add_u32 {sTMP[1]}, {sTMP[1]}, {sTMP[2]}
    s_add_u32 {sTMP[1]}, {sTMP[1]}, {DP}
    s_add_u32 {sTMP[2]}, {sTMP[1]}, {56*128}
    v_cmp_lt_u32 {sM2}, 7, {vN}
    """)
    loads = [f"buffer_load_dwordx4 {vr(64+4*j)}, {vL16}, {rWS}, {sTMP[0]} offen offset:{1024*j} sc1" for j in range(2)]
    poll(loads, [64, 68], sleep=4)
    stamp(10)
    a(f"""
    v_pk_add_f32 v[72:73], v[64:65], v[66:67]
    v_pk_add_f32 v[74:75], v[68:69], v[70:71]
    v_pk_mul_f32 v[76:77], v[64:65], v[64:65]
    v_pk_mul_f32 v[78:79], v[68:69], v[68:69]
    v_pk_add_f32 v[72:73], v[72:73], v[74:75]
    v_pk_fma_f32 v[76:77], v[66:67], v[66:67], v[76:77]
    v_pk_fma_f32 v[78:79], v[70:71], v[70:71], v[78:79]
    v_add_f32 v72, v72, v73
    v_pk_add_f32 v[76:77], v[76:77], v[78:79]
    s_nop 0
    v_add_f32 v73, v76, v77
    """)
    allreduce(["v72", "v73"], [1, 2, 4, 8, 16, 32])
    ln_scalars("v72", "v73", "v74", "v75")
    for i in range(4): ln_apply(f"v{64+2*i}", f"v{65+2*i}", "v74", "v75", f"v{76+i}")
    a(f"""
    ds_write_b64 {t[6]}, v[76:77] offset:{L_A}
    ds_write_b64 {t[6]}, v[78:79] offset:{L_A+512}
    s_waitcnt lgkmcnt(0)
    s_barrier
    s_cmp_ge_u32 {sWV}, 4
    s_cbranch_scc1 L_F2
    """)
    for ks in range(8): a(f"ds_read_b128 {vr(64+4*ks)}, {t[7]} offset:{L_A + 64*ks}")
    for ks in range(16):
        if ks + 8 < 16:
            a(f"s_waitcnt lgkmcnt(7)")
        else:
            a(f"s_waitcnt lgkmcnt({15-ks})")
        c = "0" if ks == 0 else vr(ACC)
        a(f"v_mfma_f32_16x16x32_bf16 {vr(ACC)}, {vr(GA+4*ks)}, {vr(64+4*ks)}, {c}")
        if ks + 8 < 16: a(f"ds_read_b128 {vr(64+4*(ks+8))}, {t[7]} offset:{L_A + 64*(ks+8)}")
    a(f"""
    s_nop 7
    v_cvt_pk_bf16_f32 v40, v{ACC}, v{ACC+1}
    v_cvt_pk_bf16_f32 v41, v{ACC+2}, v{ACC+3}
    ds_write_b64 {t[9]}, v[40:41] offset:{L_X}
    s_waitcnt lgkmcnt(0)
    L_F2:
    s_barrier
    ds_read_b128 v[64:67], {t[10]} offset:{L_X}
    ds_read_b128 v[68:71], {t[10]} offset:{L_X+640}
    s_waitcnt lgkmcnt(0)
    """)
    for i in range(4):
        a(f"""
        v_lshlrev_b32 v72, 16, v{64+i}
        v_and_b32 v73, 0xffff0000, v{64+i}
        v_lshlrev_b32 v74, 16, v{68+i}
        v_and_b32 v75, 0xffff0000, v{68+i}
        v_pk_mul_f32 v[72:73], v[72:73], v[74:75]
        s_nop 0
        v_cvt_pk_bf16_f32 v{76+i}, v72, v73
        """)
    a("s_nop 1")
    for mt in range(4): a(f"v_mfma_f32_16x16x32_bf16 {vr(80+4*mt)}, {vr(DA+4*mt)}, v[76:79], 0")
    a("s_nop 5")
    for jp in range(2):
        if jp == 1: a("s_nop 0")
        for i in range(4): a(f"v_cndmask_b32 v{48+4*jp+i}, v{80+8*jp+i}, v{84+8*jp+i}, {sM2}")
        tagpack(48 + 4 * jp, 48 + 4 * jp)
        a(f"buffer_store_dwordx4 {vr(48+4*jp)}, {t[11]}, {rWS}, {sTMP[1+jp]} offen sc0 sc1")
    stamp(11)
    a("L_fin:")
    if stamps:
        stamp(12)
        a(f"""
        s_lshl_b32 {sTMP[0]}, s2, 3
        s_add_u32 {sTMP[0]}, {sTMP[0]}, {sWV}
        s_lshl_b32 {sTMP[0]}, {sTMP[0]}, 7
        s_add_u32 {sTMP[0]}, {sTMP[0]}, {STAMP}
        v_lshlrev_b32 {t[0]}, 3, {vL}
        s_mov_b64 exec, 0xffff
        buffer_store_dwordx2 v[62:63], {t[0]}, {rWS}, {sTMP[0]} offen
        """)
    a("L_end:\ns_endpgm")
    body = a.text()
    errs = hazard.check(body)
    if errs: print("\n".join(errs))
    hdr = open("cdna_kernels/" + NAME + ".s.ref").read().split("; Override")[0].rstrip("\n").split("\n")
    txt = kernel_file(hdr + [f"; @launch grid=(256,1,1) block=(512,1,1) lds={LDS_BYTES}"], [(NAME + "_kernel", body, 256, 100, 256)])
    open(fname, "w").write(txt)

if __name__ == "__main__":
    gen("k1.s")
    gen("k1s.s", stamps=True)
```

```python
import sys, struct
from asmlib import *
import hazard

def f2u(x): return struct.unpack("<I", struct.pack("<f", x))[0]

QP = 0x010000; ST = 0x090000; OP = 0x0A0000; HP = 0x120000; HH = 0x160000; DP = 0x200000
STAMP = 0x10000000
L_WQ = 0x0
L_OR = 0x0
L_Q = 0x4000
L_SM = 0x4400
L_SL = 0x4480
L_C = 0x4500
L_A = 0x4800
L_X = 0x6A00
L_W = 0x7000
L_G = 0x7000; L_U = 0xF000; L_D = 0x17000
LDS_BYTES = 0x1F400

def gen(fname, stamps=False, probe=None, NFL=4, QGAT=10, SGAP=3, CPF=8, WDMA=3, codepol="", kvpol="nt", wpol="nt", gupol="nt",
        touch=True, maxspin=200000, psleep=1, wdelay=4, NEND=4, LNH=1):
    a = Asm()
    nst = [0]
    sX, sSLOT, sWV = "s3", "s4", "s5"
    sB, sS = "s6", "s7"
    sT, sFF = "s8", "s9"
    sTMP = ["s10", "s11", "s12", "s13", "s14", "s15"]
    P = {n: 16 + 2 * i for i, n in enumerate(["x", "k", "v", "wq", "wo", "bx", "wg", "wu", "wd", "out", "dbg", "ws"])}
    rK, rV, rWS, rA, rB = "s[40:43]", "s[44:47]", "s[48:51]", "s[52:55]", "s[56:59]"
    sKV = ["s60", "s61", "s62", "s63"]
    sSPIN = "s64"; sSG = "s65"
    sM1, sM2 = "s[66:67]", "s[68:69]"
    sC = ["s70", "s71", "s72", "s73"]
    sW = 76
    def srd(r, ptr, size):
        b = int(r[2:r.index(":")])
        a(f"s_mov_b32 s{b}, s{P[ptr]}\ns_mov_b32 s{b+1}, s{P[ptr]+1}\ns_mov_b32 s{b+2}, {hex(size)}\ns_mov_b32 s{b+3}, 0x20000")
    def stamp(idx):
        if probe is not None and idx == probe: a("s_memrealtime s[96:97]")
        if not stamps: return
        a(f"s_memrealtime s[92:93]\ns_waitcnt lgkmcnt(0)\nv_writelane_b32 v62, s92, {idx}\nv_writelane_b32 v63, s93, {idx}")
    vL, vN, vG = "v1", "v2", "v3"
    vT = ["v4", "v5", "v6", "v7"]
    vL16 = "v8"; vKoff = "v9"
    t = [f"v{i}" for i in range(10, 32)]
    ACC = 32; QB = 40
    vZ, vONE = "v56", "v57"
    KR = 64; VR = 128; DS_ = 192; PM = 224
    def vr(b, n=4): return f"v[{b}:{b+n-1}]"

    def allreduce(regs_, steps, op="v_add_f32"):
        tmp = t[14:22]
        for st in steps:
            if st in (16, 32):
                for r, x in zip(regs_, tmp): a(f"v_mov_b32 {x}, {r}")
                if len(regs_) < 3: a(f"s_nop {2 - len(regs_)}")
                for r, x in zip(regs_, tmp): a(f"v_permlane{st}_swap_b32 {r}, {x}")
                for r, x in zip(regs_, tmp): a(f"{op} {r}, {r}, {x}")
            else:
                ctl = {1: "quad_perm:[1,0,3,2]", 2: "quad_perm:[2,3,0,1]", 4: "row_half_mirror", "r4": "row_ror:4", 8: "row_ror:8"}[st]
                if len(regs_) < 3: a(f"s_nop {2 - len(regs_)}")
                for r in regs_: a(f"{op}_dpp {r}, {r}, {r} {ctl} row_mask:0xf bank_mask:0xf")
    def tagpack(dst, src):
        for i in range(4): a(f"v_bfi_b32 v{dst+i}, {sFF}, {vT[i]}, v{src+i}")
    npoll = [0]
    def poll(loads, grans, fulltag=(), sleep=None, pre_issued=False):
        sleep = psleep if sleep is None else sleep
        k = npoll[0]; npoll[0] += 1
        a(f"s_mov_b32 {sSPIN}, 0")
        if pre_issued: a(f"s_branch L_pc{k}")
        a(f"L_poll{k}:")
        for l in loads: a(l)
        acc = t[21]
        if pre_issued: a(f"s_waitcnt vmcnt(0)\nL_pc{k}:")
        first = True
        n = len(loads)
        for gi, g in enumerate(grans):
            if not pre_issued: a(f"s_waitcnt vmcnt({n - 1 - gi})")
            for i in range(4): a(f"v_xor_b32 v{g+i}, {vT[i]}, v{g+i}")
            if first: a(f"v_or3_b32 {acc}, v{g}, v{g+1}, v{g+2}\nv_or_b32 {acc}, {acc}, v{g+3}")
            else: a(f"v_or3_b32 {acc}, {acc}, v{g}, v{g+1}\nv_or3_b32 {acc}, {acc}, v{g+2}, v{g+3}")
            first = False
        if grans: a(f"v_and_b32 {acc}, 0xff, {acc}")
        for g in fulltag:
            if not pre_issued: a("s_waitcnt vmcnt(0)")
            if first: a(f"v_xor_b32 {acc}, {sT}, v{g+3}"); first = False
            else: a(f"v_xor_b32 {t[20]}, {sT}, v{g+3}\nv_or_b32 {acc}, {acc}, {t[20]}")
        a(f"""
        v_cmp_ne_u32 vcc, 0, {acc}
        s_add_u32 {sSPIN}, {sSPIN}, 1
        s_cmp_eq_u64 vcc, 0
        s_cbranch_scc1 L_pd{k}
        s_cmp_gt_u32 {sSPIN}, {maxspin}
        s_cbranch_scc1 L_pd{k}
        {"s_sleep %d" % sleep if sleep else ""}
        s_branch L_poll{k}
        L_pd{k}:
        """)
    def rnd1(dst, src):
        a(f"v_cvt_pk_bf16_f32 {dst}, {src}, {src}\nv_and_b32 {dst}, 0xffff0000, {dst}")
    def ln_row(base, dst, t0, hook=None):
        a(f"""
        v_pk_add_f32 v[{t0}:{t0+1}], v[{base}:{base+1}], v[{base+2}:{base+3}]
        v_pk_add_f32 v[{t0+2}:{t0+3}], v[{base+4}:{base+5}], v[{base+6}:{base+7}]
        v_pk_mul_f32 v[{t0+4}:{t0+5}], v[{base}:{base+1}], v[{base}:{base+1}]
        v_pk_mul_f32 v[{t0+6}:{t0+7}], v[{base+4}:{base+5}], v[{base+4}:{base+5}]
        v_pk_add_f32 v[{t0}:{t0+1}], v[{t0}:{t0+1}], v[{t0+2}:{t0+3}]
        v_pk_fma_f32 v[{t0+4}:{t0+5}], v[{base+2}:{base+3}], v[{base+2}:{base+3}], v[{t0+4}:{t0+5}]
        v_pk_fma_f32 v[{t0+6}:{t0+7}], v[{base+6}:{base+7}], v[{base+6}:{base+7}], v[{t0+6}:{t0+7}]
        v_add_f32 v{t0}, v{t0}, v{t0+1}
        v_pk_add_f32 v[{t0+4}:{t0+5}], v[{t0+4}:{t0+5}], v[{t0+6}:{t0+7}]
        v_add_f32 v{t0+1}, v{t0+4}, v{t0+5}
        s_nop 0
        """)
        allreduce([f"v{t0}", f"v{t0+1}"], [1, 2, 4, 8, 16, 32])
        if hook: hook()
        vs, vq, vm, vri = f"v{t0}", f"v{t0+1}", f"v{t0+2}", f"v{t0+4}"
        a(f"""
        v_mul_f32 {vs}, {hex(f2u(1/512))}, {vs}
        v_mul_f32 {vq}, {hex(f2u(1/512))}, {vq}
        v_fma_f32 {vq}, -{vs}, {vs}, {vq}
        v_max_f32 {vq}, 0, {vq}
        v_cvt_pk_bf16_f32 {vq}, {vs}, {vq}
        v_lshlrev_b32 {vm}, 16, {vq}
        v_and_b32 {vq}, 0xffff0000, {vq}
        v_add_f32 {vq}, {hex(f2u(1e-5))}, {vq}
        """)
        rnd1(vq, vq)
        a(f"v_sqrt_f32 {vq}, {vq}")
        for i in range(4): a(f"v_pk_add_f32 v[{base+2*i}:{base+2*i+1}], v[{base+2*i}:{base+2*i+1}], v[{t0+2}:{t0+3}] op_sel_hi:[1,0] neg_lo:[0,1] neg_hi:[0,1]")
        rnd1(vq, vq)
        a(f"v_rcp_f32 {vri}, {vq}")
        for i in range(4): a(f"v_cvt_pk_bf16_f32 v{dst+i}, v{base+2*i}, v{base+2*i+1}")
        for i in range(4): a(f"v_lshlrev_b32 v{base+2*i}, 16, v{dst+i}\nv_and_b32 v{base+2*i+1}, 0xffff0000, v{dst+i}")
        for i in range(4): a(f"v_pk_mul_f32 v[{base+2*i}:{base+2*i+1}], v[{base+2*i}:{base+2*i+1}], v[{t0+4}:{t0+5}] op_sel_hi:[1,0]")
        for i in range(4): a(f"v_cvt_pk_bf16_f32 v{dst+i}, v{base+2*i}, v{base+2*i+1}")
    def unpack4(dst, s0, s1):
        a(f"v_lshlrev_b32 v{dst}, 16, {s0}\nv_and_b32 v{dst+1}, 0xffff0000, {s0}\nv_lshlrev_b32 v{dst+2}, 16, {s1}\nv_and_b32 v{dst+3}, 0xffff0000, {s1}")
    def sumgr(bases):
        bases = list(bases)
        while len(bases) > 1:
            nb = []
            for i in range(0, len(bases) - 1, 2):
                x, y = bases[i], bases[i + 1]
                a(f"v_pk_add_f32 v[{x}:{x+1}], v[{x}:{x+1}], v[{y}:{y+1}]\nv_pk_add_f32 v[{x+2}:{x+3}], v[{x+2}:{x+3}], v[{y+2}:{y+3}]")
                nb.append(x)
            if len(bases) % 2: nb.append(bases[-1])
            bases = nb
    vm = []
    def vload(name, txt): a(txt); vm.append(name)
    def vwait(name): a(f"s_waitcnt vmcnt({len(vm) - 1 - vm.index(name)})")
    stream = [("K", i) for i in range(16)] + [("V", i) for i in range(16)]
    sp = [0]
    def nxt(n=1, N=None):
        for _ in range(n):
            i = sp[0]; sp[0] += 1
            NN = N or NFL
            if i >= NN: vwait(f"S{i-NN}")
            kind, q = stream[i]
            bt = q >> 2
            if kind == "K":
                h, lh = (q >> 1) & 1, q & 1
                vload(f"S{i}", f"buffer_load_dwordx4 {vr(KR + 4*q)}, {vKoff}, {rK}, {sKV[bt]} offen offset:{h*2048 + lh*128} {kvpol}")
            else:
                vload(f"S{i}", f"buffer_load_dwordx4 {vr(VR + 4*q)}, {vL16}, {rV}, {sKV[bt]} offen offset:{(q&3)*1024} {kvpol}")
    def arrive(c):
        a(f"s_mov_b64 exec, 1\nds_add_u32 {vZ}, {vONE} offset:{L_C + 4*c}\ns_mov_b64 exec, -1")
    nwait = [0]
    def lwait(c, n=8):
        k = nwait[0]; nwait[0] += 1
        a(f"""
        L_lw{k}:
        ds_read_b32 v58, {vZ} offset:{L_C + 4*c}
        s_waitcnt lgkmcnt(0)
        v_readfirstlane_b32 {sSPIN}, v58
        s_nop 0
        s_cmp_lt_u32 {sSPIN}, {n}
        s_cbranch_scc1 L_lw{k}
        """)
    def tr_addr(dst, gshift, rowshift):
        a(f"""
        v_lshrrev_b32 {dst}, 2, {vN}
        v_lshl_add_u32 {dst}, {vG}, {gshift}, {dst}
        v_lshlrev_b32 {dst}, {rowshift}, {dst}
        v_and_b32 {t[19]}, 3, {vN}
        v_lshl_add_u32 {dst}, {t[19]}, 3, {dst}
        """)

    a(f"""
    s_cmp_ge_u32 s2, 256
    s_cbranch_scc1 L_end
    s_load_dwordx16 s[16:31], s[0:1], 0
    s_load_dwordx8 s[32:39], s[0:1], 64
    """)
    if probe is not None or stamps: a("s_memrealtime s[94:95]")
    a(f"""
    s_getpc_b64 s[10:11]
    L_pc:
    s_lshr_b32 {sSLOT}, s2, 3
    s_and_b32 s12, {sSLOT}, {CPF-1}
    s_lshl_b32 s12, s12, {14 - (CPF.bit_length()-1)}
    v_lshl_add_u32 v252, v0, 4, s12
    s_sub_u32 s10, s10, L_pc-{NAME}_kernel
    s_subb_u32 s11, s11, 0
    v_min_u32 v252, L_codeend-{NAME}_kernel-16, v252
    v_cmp_gt_u32 vcc, {1024//CPF}, v0
    s_and_saveexec_b64 s[12:13], vcc
    s_cbranch_execz L_nocpf
    global_load_dwordx4 v[244:247], v252, s[10:11] {codepol}
    L_nocpf:
    s_mov_b64 exec, -1
    v_lshrrev_b32 {t[0]}, 6, v0
    v_and_b32 {vL}, 63, v0
    s_and_b32 {sX}, s2, 7
    v_readfirstlane_b32 {sWV}, {t[0]}
    s_lshr_b32 {sB}, {sSLOT}, 2
    s_and_b32 {sS}, {sSLOT}, 3
    v_and_b32 {vN}, 15, {vL}
    v_lshrrev_b32 {vG}, 4, {vL}
    v_lshlrev_b32 {vL16}, 4, {vL}
    v_bfe_u32 {t[0]}, {vN}, 1, 1
    v_lshlrev_b32 {t[0]}, 10, {t[0]}
    v_lshrrev_b32 {t[1]}, 2, {vN}
    v_lshl_add_u32 {t[0]}, {t[1]}, 8, {t[0]}
    v_and_b32 {t[1]}, 1, {vN}
    v_lshl_add_u32 {t[0]}, {t[1]}, 6, {t[0]}
    v_lshl_add_u32 {vKoff}, {vG}, 4, {t[0]}
    s_lshl_b32 {sTMP[0]}, {sB}, 24
    s_lshl_b32 {sTMP[1]}, {sX}, 21
    s_add_u32 {sTMP[0]}, {sTMP[0]}, {sTMP[1]}
    s_lshl_b32 {sTMP[1]}, {sS}, 17
    s_add_u32 {sTMP[0]}, {sTMP[0]}, {sTMP[1]}
    s_add_u32 {sTMP[0]}, {sTMP[0]}, {6144*256}
    s_lshl_b32 {sTMP[1]}, {sX}, 2
    s_xor_b32 {sTMP[1]}, {sTMP[1]}, {sSLOT}
    s_lshl_b32 {sTMP[2]}, {sWV}, 2
    s_xor_b32 {sTMP[1]}, {sTMP[1]}, {sTMP[2]}
    """)
    for bt in range(4):
        a(f"s_xor_b32 {sTMP[2]}, {sTMP[1]}, {bt}\ns_lshl_b32 {sTMP[2]}, {sTMP[2]}, 12\ns_add_u32 {sKV[bt]}, {sTMP[0]}, {sTMP[2]}")
    XR = 192
    a(f"""
    v_lshrrev_b32 {t[2]}, 3, {vL}
    v_lshlrev_b32 {t[2]}, 13, {t[2]}
    v_and_b32 {t[3]}, 7, {vL}
    v_lshl_add_u32 {t[2]}, {t[3]}, 4, {t[2]}
    s_lshl_b32 {sTMP[1]}, {sS}, 20                  ; kq*128*8192
    s_lshl_b32 {sTMP[2]}, {sX}, 10
    s_add_u32 {sTMP[1]}, {sTMP[1]}, {sTMP[2]}
    s_lshl_b32 {sTMP[2]}, {sB}, 7                   ; lg*128
    s_add_u32 {sTMP[1]}, {sTMP[1]}, {sTMP[2]}
    s_lshl_b32 {sTMP[2]}, {sWV}, 17
    s_add_u32 {sTMP[1]}, {sTMP[1]}, {sTMP[2]}
    s_lshl_b32 {sTMP[3]}, {sWV}, 11
    s_lshl_b32 {sTMP[0]}, {sWV}, 10
    v_mov_b32 {vZ}, 0
    v_mov_b32 {vONE}, 1
    v_lshlrev_b32 v58, 2, {vN}
    ds_write_b32 v58, {vZ} offset:{L_C}
    s_mov_b32 s54, 8192
    s_mov_b32 s55, 0x20000
    s_mov_b32 s58, 0x400000
    s_mov_b32 s59, 0x20000
    s_mov_b32 s42, 0x8000000
    s_mov_b32 s43, 0x20000
    s_add_u32 m0, {sTMP[3]}, {L_WQ}
    s_waitcnt lgkmcnt(0)
    s_mov_b32 s52, s{P['x']}
    s_mov_b32 s53, s{P['x']+1}
    s_mov_b32 s56, s{P['wq']}
    s_mov_b32 s57, s{P['wq']+1}
    """)
    vload("x", f"buffer_load_dwordx4 {vr(XR)}, {vL16}, {rA}, {sTMP[0]} offen")
    vload("wq0", f"buffer_load_dwordx4 {t[2]}, {rB}, {sTMP[1]} offen {wpol} lds")
    a(f"s_add_u32 m0, {sTMP[3]}, {L_WQ + 1024}\ns_add_u32 {sTMP[2]}, {sTMP[1]}, 65536")
    vload("wq1", f"buffer_load_dwordx4 {t[2]}, {rB}, {sTMP[2]} offen {wpol} lds")
    a(f"s_mov_b32 s40, s{P['k']}\ns_mov_b32 s41, s{P['k']+1}\ns_barrier")
    nxt(NFL)
    a(f"s_load_dword {sT}, s[{P['ws']}:{P['ws']+1}], 0")
    srd(rV, "v", 0x8000000); srd(rWS, "ws", 0x20000000)
    if stamps: a("v_mov_b32 v62, 0\nv_mov_b32 v63, 0\nv_writelane_b32 v62, s94, 0\nv_writelane_b32 v63, s95, 0")
    a(f"""
    s_mov_b32 {sFF}, 0xff
    s_waitcnt lgkmcnt(0)
    s_add_u32 {sT}, {sT}, 0x9E3779B1
    s_and_b32 {sTMP[0]}, {sT}, 0xff
    v_mov_b32 {vT[0]}, {sTMP[0]}
    s_bfe_u32 {sTMP[0]}, {sT}, 0x80008
    v_mov_b32 {vT[1]}, {sTMP[0]}
    s_bfe_u32 {sTMP[0]}, {sT}, 0x80010
    v_mov_b32 {vT[2]}, {sTMP[0]}
    s_lshr_b32 {sTMP[0]}, {sT}, 24
    v_mov_b32 {vT[3]}, {sTMP[0]}
    """)
    vwait("x")
    stamp(14)
    unpack4(196, f"v{XR}", f"v{XR+1}"); unpack4(200, f"v{XR+2}", f"v{XR+3}")
    ln_row(196, 208, 212, hook=(lambda: nxt(LNH, N=NFL + LNH)) if LNH else None)
    a(f"""
    s_mul_i32 {sTMP[0]}, {sWV}, 272
    v_lshl_add_u32 {t[4]}, {vN}, 4, {sTMP[0]}
    v_cmp_eq_u32 vcc, {sS}, {vG}
    s_and_saveexec_b64 {sM1}, vcc
    ds_write_b128 {t[4]}, v[208:211] offset:{L_A}
    s_mov_b64 exec, -1
    """)
    vwait("wq1")
    arrive(0)
    stamp(15)
    nxt(1)
    if touch:
        a(f"s_cmp_lg_u32 {sWV}, 7\ns_cbranch_scc1 L_notouch\ns_mov_b64 exec, 1")
        a(f"s_lshl_b32 {sTMP[0]}, {sX}, 19\nv_mov_b32 {t[4]}, {sTMP[0]}")
        a(f"global_load_dword v240, {t[4]}, s[{P['wo']}:{P['wo']+1}] nt")
        for k_, nm in enumerate(["wg", "wu", "wd"]):
            a(f"global_load_dword v{241+k_}, {vZ}, s[{P[nm]}:{P[nm]+1}] nt")
        a(f"v_mov_b32 {t[4]}, {sKV[0]}\nglobal_load_dword v244, {t[4]}, s[{P['v']}:{P['v']+1}] nt")
        a(f"v_mov_b32 {t[4]}, {DP + 0xD0000}\nbuffer_load_dword v245, {t[4]}, {rWS}, 0 offen sc1")
        a("s_mov_b64 exec, -1\nL_notouch:")
    WA = 192; QD = 224; XO = 232
    a(f"s_cmp_ge_u32 {sWV}, 2\ns_cbranch_scc1 L_noq")
    tr_addr(t[8], 3, 7)
    a(f"""
    s_lshl_b32 {sTMP[0]}, {sWV}, 6
    v_add_u32 {t[8]}, {sTMP[0]}, {t[8]}
    v_and_b32 {t[0]}, 7, {vN}
    v_mul_u32_u24 {t[9]}, 272, {t[0]}
    v_lshl_add_u32 {t[9]}, {vG}, 4, {t[9]}
    v_lshlrev_b32 {t[0]}, 13, {t[0]}
    v_lshrrev_b32 {t[1]}, 3, {vN}
    v_lshl_add_u32 {t[0]}, {t[1]}, 6, {t[0]}
    v_lshl_add_u32 {t[0]}, {vG}, 4, {t[0]}
    v_cmp_lt_u32 vcc, 7, {vN}
    s_lshl_b32 {sTMP[0]}, {sX}, 16
    s_lshl_b32 {sTMP[1]}, {sS}, 11
    s_add_u32 {sTMP[0]}, {sTMP[0]}, {sTMP[1]}
    s_lshl_b32 {sTMP[1]}, {sB}, 8
    s_add_u32 {sTMP[0]}, {sTMP[0]}, {sTMP[1]}
    s_lshl_b32 {sTMP[1]}, {sWV}, 7
    s_add_u32 {sTMP[0]}, {sTMP[0]}, {sTMP[1]}
    s_add_u32 {sTMP[0]}, {sTMP[0]}, {QP}
    """)
    lwait(0)
    for ks in range(4): a(f"ds_read_b128 {vr(XO+4*ks)}, {t[9]} offset:{L_A + 64*ks}")
    for ks in range(4):
        for mt in range(2):
            for hf in range(2):
                r = WA + (mt * 4 + ks) * 4 + 2 * hf
                a(f"ds_read_b64_tr_b16 v[{r}:{r+1}], {t[8]} offset:{L_WQ + ks*4096 + hf*512 + mt*32}")
        if ks == 1: a("s_waitcnt lgkmcnt(0)")
    a("s_waitcnt lgkmcnt(0)")
    for ks in range(4):
        for mt in range(2):
            c = "0" if ks == 0 else vr(QD + 4 * mt)
            a(f"v_mfma_f32_16x16x32_bf16 {vr(QD+4*mt)}, {vr(WA+(mt*4+ks)*4)}, {vr(XO+4*ks)}, {c}")
    a("s_nop 7")
    for i in range(4): a(f"v_cndmask_b32 v{48+i}, v{QD+i}, v{QD+4+i}, vcc")
    tagpack(48, 48)
    a(f"buffer_store_dwordx4 {vr(48)}, {t[0]}, {rWS}, {sTMP[0]} offen sc0 sc1")
    stamp(1)
    a("L_noq:")
    nxt(QGAT - sp[0])
    a(f"""
    s_lshl_b32 {sTMP[0]}, {sX}, 3
    s_add_u32 {sTMP[0]}, {sTMP[0]}, {sB}
    s_lshl_b32 {sTMP[0]}, {sTMP[0]}, 13
    s_lshl_b32 {sTMP[1]}, {sWV}, 8
    s_add_u32 {sTMP[0]}, {sTMP[0]}, {sTMP[1]}
    s_add_u32 {sTMP[5]}, {sTMP[0]}, {QP}
    v_lshlrev_b32 {t[10]}, 11, {vG}
    v_lshl_add_u32 {t[10]}, {vN}, 4, {t[10]}
    """)
    qld = f"buffer_load_dwordx4 v[52:55], {t[10]}, {rWS}, {sTMP[5]} offen sc1"
    vload("qg", qld)
    nxt(NFL)
    vwait("qg")
    poll([qld], [52], pre_issued=True, sleep=2)
    allreduce(["v52", "v53", "v54", "v55"], [16, 32])
    a(f"""
    v_cvt_pk_bf16_f32 v52, v52, v53
    v_cvt_pk_bf16_f32 v53, v54, v55
    s_lshl_b32 {sTMP[0]}, {sWV}, 7
    v_lshl_add_u32 {t[4]}, {vN}, 3, {sTMP[0]}
    s_mov_b64 exec, 0xffff
    ds_write_b64 {t[4]}, v[52:53] offset:{L_Q}
    s_mov_b64 exec, -1
    """)
    arrive(1)
    stamp(3)
    nxt(max(0, 18 - sp[0]))
    a(f"""
    v_and_b32 {t[0]}, 3, {vN}
    v_lshlrev_b32 {t[0]}, 8, {t[0]}
    v_bfe_u32 {t[1]}, {vN}, 2, 1
    v_lshl_add_u32 {t[0]}, {t[1]}, 6, {t[0]}
    v_lshl_add_u32 {t[0]}, {vG}, 4, {t[0]}
    v_cmp_eq_u32 {sM1}, 1, {t[1]}
    s_mov_b32 {sC[0]}, {hex(f2u(128**-0.5))}
    s_mov_b32 {sC[1]}, {hex(f2u(1.4426950408889634))}
    s_mov_b32 {sC[2]}, 0x05040100
    s_mov_b32 {sC[3]}, 0x07060302
    """)
    lwait(1)
    a(f"ds_read_b128 {vr(QB)}, {t[0]} offset:{L_Q}\nds_read_b128 {vr(QB+4)}, {t[0]} offset:{L_Q+128}")
    stamp(4)
    nxt(1)
    vwait("S11")
    a("s_waitcnt lgkmcnt(0)")
    for tt in range(6): a(f"v_mfma_f32_16x16x32_bf16 {vr(DS_+4*tt)}, {vr(KR+8*tt)}, {vr(QB)}, 0")
    for tt in range(6): a(f"v_mfma_f32_16x16x32_bf16 {vr(DS_+4*tt)}, {vr(KR+8*tt+4)}, {vr(QB+4)}, {vr(DS_+4*tt)}")
    nxt(1)
    vwait("S15")
    for tt in range(6, 8): a(f"v_mfma_f32_16x16x32_bf16 {vr(DS_+4*tt)}, {vr(KR+8*tt)}, {vr(QB)}, 0")
    for tt in range(6, 8): a(f"v_mfma_f32_16x16x32_bf16 {vr(DS_+4*tt)}, {vr(KR+8*tt+4)}, {vr(QB+4)}, {vr(DS_+4*tt)}")
    SC = KR
    for tt in range(8):
        for e in range(2):
            a(f"v_cndmask_b32 v{DS_+4*tt+2*e}, v{DS_+4*tt+2*e}, v{DS_+4*tt+2*e+1}, {sM1}")
    for tt in range(8):
        for e in range(2):
            r = DS_ + 4 * tt + 2 * e
            a(f"v_add_f32_dpp v{SC+2*tt+e}, v{r}, v{r} row_ror:4 row_mask:0xf bank_mask:0xf")
    nxt(1)
    for tt in range(8):
        lo, hi = f"v{SC+2*tt}", f"v{SC+2*tt+1}"
        a(f"""
        v_cvt_pk_bf16_f32 {t[2]}, {lo}, {hi}
        v_lshlrev_b32 {lo}, 16, {t[2]}
        v_and_b32 {hi}, 0xffff0000, {t[2]}
        v_mul_f32 {lo}, {sC[0]}, {lo}
        v_mul_f32 {hi}, {sC[0]}, {hi}
        v_cvt_pk_bf16_f32 {t[2]}, {lo}, {hi}
        v_lshlrev_b32 {lo}, 16, {t[2]}
        v_and_b32 {hi}, 0xffff0000, {t[2]}
        """)
    a(f"v_max3_f32 {t[3]}, v{SC}, v{SC+1}, v{SC+2}")
    for i in range(3, 15, 2): a(f"v_max3_f32 {t[3]}, {t[3]}, v{SC+i}, v{SC+i+1}")
    a(f"v_max_f32 {t[3]}, {t[3]}, v{SC+15}")
    allreduce([t[3]], [16, 32], op="v_max_f32")
    a(f"""
    v_and_b32 {t[4]}, 3, {vN}
    v_lshlrev_b32 {t[4]}, 5, {t[4]}
    s_lshl_b32 {sTMP[0]}, {sWV}, 2
    v_add_u32 {t[5]}, {sTMP[0]}, {t[4]}
    s_mov_b64 exec, 0xf
    ds_write_b32 {t[5]}, {t[3]} offset:{L_SM}
    s_mov_b64 exec, -1
    """)
    arrive(2)
    nxt(SGAP)
    lwait(2)
    a(f"""
    ds_read_b128 v[80:83], {t[4]} offset:{L_SM}
    ds_read_b128 v[84:87], {t[4]} offset:{L_SM+16}
    s_waitcnt lgkmcnt(0)
    v_max3_f32 {t[3]}, v80, v81, v82
    v_max3_f32 {t[3]}, {t[3]}, v83, v84
    v_max3_f32 {t[3]}, {t[3]}, v85, v86
    v_max_f32 {t[3]}, {t[3]}, v87
    """)
    for i in range(16): a(f"v_sub_f32 v{SC+i}, v{SC+i}, {t[3]}")
    for i in range(16): a(f"v_mul_f32 v{SC+i}, {sC[1]}, v{SC+i}")
    for i in range(16): a(f"v_exp_f32 v{SC+i}, v{SC+i}")
    nxt(1)
    a(f"v_add_f32 {t[6]}, v{SC}, v{SC+1}\nv_add_f32 {t[7]}, v{SC+2}, v{SC+3}")
    for i in range(4, 16, 2): a(f"v_add_f32 {t[6]}, {t[6]}, v{SC+i}\nv_add_f32 {t[7]}, {t[7]}, v{SC+i+1}")
    a(f"v_add_f32 {t[6]}, {t[6]}, {t[7]}")
    allreduce([t[6]], [16, 32])
    a(f"s_mov_b64 exec, 0xf\nds_write_b32 {t[5]}, {t[6]} offset:{L_SL}\ns_mov_b64 exec, -1")
    arrive(3)
    PA = 80
    for tt in range(8): a(f"v_cvt_pk_bf16_f32 v{PA+tt}, v{SC+2*tt}, v{SC+2*tt+1}")
    a(f"v_lshrrev_b32 {t[7]}, 2, {vN}")
    for gg in range(4):
        a(f"v_cmp_eq_u32 vcc, {gg}, {t[7]}\ns_nop 1")
        for i in range(8): a(f"v_cndmask_b32 v{PM+8*gg+i}, 0, v{PA+i}, vcc")
    nxt(1)
    stamp(5)
    srd(rA, "dbg", 256)
    a(f"""
    v_mov_b32 v59, 1
    s_cmp_lg_u32 {sWV}, 3
    s_cbranch_scc1 L_notk
    s_mov_b64 exec, 1
    buffer_atomic_add v59, {vZ}, {rA}, 0 offen sc0 sc1
    s_mov_b64 exec, -1
    L_notk:
    """)
    tk_after = [f"S{sp[0]}"]
    a(f"s_cmp_lg_u32 {sWV}, 2\ns_cbranch_scc1 L_nostat")
    lwait(3)
    a(f"""
    ds_read_b128 v[88:91], {t[4]} offset:{L_SL}
    ds_read_b128 v[92:95], {t[4]} offset:{L_SL+16}
    s_lshl_b32 {sTMP[0]}, {sX}, 5
    s_add_u32 {sTMP[0]}, {sTMP[0]}, {sSLOT}
    s_lshl_b32 {sTMP[0]}, {sTMP[0]}, 6
    s_add_u32 {sTMP[0]}, {sTMP[0]}, {ST}
    s_waitcnt lgkmcnt(0)
    v_pk_add_f32 v[88:89], v[88:89], v[90:91]
    v_pk_add_f32 v[92:93], v[92:93], v[94:95]
    v_mov_b32 v48, {t[3]}
    v_pk_add_f32 v[88:89], v[88:89], v[92:93]
    v_mov_b32 v50, 0
    v_mov_b32 v51, {sT}
    v_add_f32 v49, v88, v89
    s_mov_b64 exec, 0xf
    buffer_store_dwordx4 v[48:51], {vL16}, {rWS}, {sTMP[0]} offen sc0 sc1
    s_mov_b64 exec, -1
    L_nostat:
    """)
    VT = [96, 64]
    def perms(u, jj):
        vwait(f"S{16 + 8*u + 2*jj + 1}")
        for i in range(8):
            hi = VR + (8 * u + 2 * jj + 1) * 4 + (i >> 1); lo = VR + (8 * u + 2 * jj) * 4 + (i >> 1)
            a(f"v_perm_b32 v{VT[u]+4*i+jj}, v{hi}, v{lo}, {sC[2 + (i & 1)]}")
    def pvm(u):
        for i in range(8):
            e = i & 1; gg = i >> 1
            c = "0" if (u == 0 and gg == 0) else vr(ACC + 4 * e)
            a(f"v_mfma_f32_16x16x32_bf16 {vr(ACC+4*e)}, {vr(PM+8*gg+4*u)}, {vr(VT[u]+4*i)}, {c}")
    nxt(max(0, min(30, 24 + NEND) - sp[0]), N=NEND)
    for jj in range(4): perms(0, jj)
    pvm(0)
    a(f"""
    s_lshl_b32 {sTMP[0]}, {sWV}, 11
    v_add_u32 {t[0]}, {sTMP[0]}, {vL16}
    """)
    nxt(32 - sp[0], N=NEND)
    for jj in range(4): perms(1, jj)
    pvm(1)
    a(f"""
    s_cmp_eq_u32 {sWV}, 3
    s_cselect_b64 exec, 1, 0
    ds_write_b32 {vZ}, v59 offset:{L_C + 32}
    s_mov_b64 exec, -1
    s_nop 2
    ds_write_b128 {t[0]}, {vr(ACC)} offset:{L_OR}
    ds_write_b128 {t[0]}, {vr(ACC+4)} offset:{L_OR+1024}
    s_sub_u32 {sTMP[3]}, {sWV}, 4
    s_lshl_b32 {sTMP[4]}, {sTMP[3]}, 10
    v_add_u32 {t[0]}, {sTMP[4]}, {vL16}
    s_lshl_b32 {sTMP[0]}, {sX}, 5
    s_add_u32 {sTMP[0]}, {sTMP[0]}, {sSLOT}
    s_lshl_b32 {sTMP[0]}, {sTMP[0]}, 11
    s_add_u32 {sTMP[0]}, {sTMP[0]}, {OP}
    """)
    stamp(6)
    a(f"s_cmp_ge_u32 {sTMP[3]}, 2\ns_waitcnt lgkmcnt(0)\ns_barrier\ns_cbranch_scc1 L_noored")
    for w in range(8): a(f"ds_read_b128 {vr(64+4*w)}, {t[0]} offset:{L_OR + 2048*w}")
    a("s_waitcnt lgkmcnt(4)")
    sumgr([64, 68, 72, 76])
    a("s_waitcnt lgkmcnt(0)")
    sumgr([80, 84, 88, 92]); sumgr([64, 80])
    tagpack(48, 64)
    a(f"buffer_store_dwordx4 v[48:51], {t[0]}, {rWS}, {sTMP[0]} offen sc0 sc1\nL_noored:")
    stamp(8)
    a(f"""
    ds_read_b32 v59, {vZ} offset:{L_C + 32}
    s_waitcnt lgkmcnt(0)
    v_readfirstlane_b32 {sTMP[5]}, v59
    s_barrier
    s_cmp_lt_u32 {sTMP[5]}, 56
    s_cbranch_scc1 L_F
    s_cmp_ge_u32 {sTMP[5]}, 184
    s_cbranch_scc1 L_fin
    s_sub_u32 {sTMP[5]}, {sTMP[5]}, 56
    s_and_b32 {sX}, {sTMP[5]}, 7
    s_lshr_b32 {sSLOT}, {sTMP[5]}, 3
    """)
    if stamps: a(f"v_writelane_b32 v62, 1, 2\nv_writelane_b32 v63, 0, 2")
    srd(rA, "wo", 0x400000)
    a(f"""
    v_bfe_u32 {t[1]}, {vL}, 3, 2
    v_lshlrev_b32 {t[1]}, 17, {t[1]}
    v_lshrrev_b32 {t[2]}, 5, {vL}
    v_lshl_add_u32 {t[1]}, {t[2]}, 13, {t[1]}
    v_and_b32 {t[2]}, 7, {vL}
    v_lshl_add_u32 {t[1]}, {t[2]}, 4, {t[1]}
    s_lshl_b32 {sTMP[0]}, {sX}, 9
    s_lshr_b32 {sTMP[1]}, {sSLOT}, 3
    s_add_u32 {sTMP[0]}, {sTMP[0]}, {sTMP[1]}
    s_lshl_b32 {sTMP[0]}, {sTMP[0]}, 10
    s_and_b32 {sTMP[1]}, {sSLOT}, 7
    s_lshl_b32 {sTMP[1]}, {sTMP[1]}, 7
    s_add_u32 {sTMP[0]}, {sTMP[0]}, {sTMP[1]}
    s_lshr_b32 {sTMP[1]}, {sWV}, 1
    s_lshl_b32 {sTMP[1]}, {sTMP[1]}, 11
    s_add_u32 {sTMP[0]}, {sTMP[0]}, {sTMP[1]}
    s_and_b32 {sTMP[1]}, {sWV}, 1
    s_lshl_b32 {sTMP[1]}, {sTMP[1]}, 16
    s_add_u32 {sTMP[0]}, {sTMP[0]}, {sTMP[1]}
    s_lshl_b32 {sTMP[2]}, {sWV}, 12
    s_add_u32 {sTMP[2]}, {sTMP[2]}, {L_W}
    """)
    for i in range(4):
        a(f"s_add_u32 m0, {sTMP[2]}, {1024*i}\ns_add_u32 {sTMP[1]}, {sTMP[0]}, {16384*i}")
        a(f"buffer_load_dwordx4 {t[1]}, {rA}, {sTMP[1]} offen {wpol} lds")
    a(f"""
    s_lshl_b32 {sTMP[0]}, {sX}, 3
    s_add_u32 {sTMP[0]}, {sTMP[0]}, {sWV}
    s_lshl_b32 {sSG}, {sTMP[0]}, 8
    s_add_u32 {sSG}, {sSG}, {ST}
    v_lshlrev_b32 {t[11]}, 4, {vN}
    s_lshl_b32 {sTMP[2]}, {sTMP[0]}, 13
    s_lshr_b32 {sTMP[3]}, {sSLOT}, 3
    s_lshl_b32 {sTMP[3]}, {sTMP[3]}, 10
    s_add_u32 {sTMP[2]}, {sTMP[2]}, {sTMP[3]}
    s_add_u32 {sTMP[2]}, {sTMP[2]}, {OP}
    s_add_u32 {sTMP[3]}, {sTMP[2]}, 4096
    """)
    sgld = f"buffer_load_dwordx4 v[52:55], {t[11]}, {rWS}, {sSG} offen sc1"
    poll([sgld], [], fulltag=[52], sleep=3)
    a("s_barrier")
    a(f"""
    v_max_f32_dpp {t[2]}, v52, v52 row_ror:4 row_mask:0xf bank_mask:0xf
    s_mul_i32 {sTMP[4]}, {sWV}, 528
    v_lshlrev_b32 {t[6]}, 3, {vL}
    v_max_f32_dpp {t[2]}, {t[2]}, {t[2]} row_ror:8 row_mask:0xf bank_mask:0xf
    v_sub_f32 {t[3]}, v52, {t[2]}
    v_mul_f32 {t[3]}, {sC[1]}, {t[3]}
    v_exp_f32 {t[3]}, {t[3]}
    v_add_u32 {t[6]}, {sTMP[4]}, {t[6]}
    v_mul_f32 {t[4]}, {t[3]}, v53
    v_and_b32 {t[7]}, 7, {vN}
    v_mul_u32_u24 {t[7]}, 528, {t[7]}
    v_add_f32_dpp {t[5]}, {t[4]}, {t[4]} row_ror:4 row_mask:0xf bank_mask:0xf
    v_lshl_add_u32 {t[7]}, {vG}, 4, {t[7]}
    v_lshlrev_b32 {t[8]}, 15, {vN}
    v_add_f32_dpp {t[5]}, {t[5]}, {t[5]} row_ror:8 row_mask:0xf bank_mask:0xf
    v_rcp_f32 {t[5]}, {t[5]}
    v_lshl_add_u32 {t[8]}, {vG}, 4, {t[8]}
    v_mul_f32 {t[3]}, {t[3]}, {t[5]}
    s_nop 0
    """)
    for i in range(16): a(f"v_readlane_b32 s{sW+i}, {t[3]}, {i}")
    tr_addr(t[0], 3, 7)
    a(f"""
    s_and_b32 {sTMP[5]}, {sWV}, 3
    s_lshl_b32 {sTMP[0]}, {sTMP[5]}, 5
    v_add_u32 {t[0]}, {sTMP[0]}, {t[0]}
    s_and_b32 {sTMP[0]}, {sSLOT}, 7
    s_lshl_b32 {sTMP[0]}, {sTMP[0]}, 4
    s_lshl_b32 {sTMP[1]}, {sX}, 1
    s_add_u32 {sTMP[0]}, {sTMP[0]}, {sTMP[1]}
    s_lshr_b32 {sTMP[1]}, {sSLOT}, 3
    s_add_u32 {sTMP[0]}, {sTMP[0]}, {sTMP[1]}
    s_lshl_b32 {sTMP[0]}, {sTMP[0]}, 8
    s_lshl_b32 {sTMP[1]}, {sTMP[5]}, 6
    s_add_u32 {sTMP[0]}, {sTMP[0]}, {sTMP[1]}
    s_add_u32 {sTMP[0]}, {sTMP[0]}, {HP}
    """)
    WA2 = 128
    for ks in range(8):
        for hf in range(2):
            r = WA2 + 4 * ks + 2 * hf
            a(f"ds_read_b64_tr_b16 v[{r}:{r+1}], {t[0]} offset:{L_W + ks*4096 + hf*512}")
        if ks == 5: a("s_waitcnt lgkmcnt(0)")
    stamp(9)
    loads = [f"buffer_load_dwordx4 {vr(64+4*s)}, {vL16}, {rWS}, {sTMP[2 + (s>>1)]} offen offset:{(s&1)*2048} sc1" for s in range(4)]
    poll(loads, [64, 68, 72, 76])
    stamp(10)
    for r in range(4): a(f"v_mul_f32 v{64+r}, s{sW+r}, v{64+r}")
    for s in range(1, 4):
        for r in range(4): a(f"v_fmac_f32 v{64+r}, s{sW+4*s+r}, v{64+4*s+r}")
    WA2 = 128
    a(f"""
    v_cvt_pk_bf16_f32 v68, v64, v65
    v_cvt_pk_bf16_f32 v69, v66, v67
    ds_write_b64 {t[6]}, v[68:69] offset:{L_A}
    s_cmp_ge_u32 {sWV}, 4
    s_waitcnt lgkmcnt(0)
    s_barrier
    s_cbranch_scc1 L_HO
    """)
    for ks in range(8): a(f"ds_read_b128 {vr(64+4*ks)}, {t[7]} offset:{L_A + 64*ks}")
    for ks in range(8):
        a(f"s_waitcnt lgkmcnt({7-ks})")
        c = "0" if ks == 0 else vr(ACC)
        a(f"v_mfma_f32_16x16x32_bf16 {vr(ACC)}, {vr(WA2+4*ks)}, {vr(64+4*ks)}, {c}")
    a("s_mov_b32 exec_lo, 0x00ff00ff\ns_mov_b32 exec_hi, 0x00ff00ff\ns_nop 5")
    tagpack(48, ACC)
    a(f"buffer_store_dwordx4 v[48:51], {t[8]}, {rWS}, {sTMP[0]} offen sc0 sc1\ns_mov_b64 exec, -1")
    stamp(11)
    a("s_branch L_fin")
    a(f"""
    L_HO:
    s_cmp_eq_u32 {sWV}, 6
    s_cbranch_scc1 L_O
    s_cmp_lg_u32 {sWV}, 4
    s_cbranch_scc1 L_fin
    s_cmp_ge_u32 {sSLOT}, 8
    s_cbranch_scc1 L_fin
    """)
    srd(rA, "x", 8192)
    a(f"""
    s_lshl_b32 {sTMP[0]}, {sX}, 10
    s_lshl_b32 {sTMP[1]}, {sSLOT}, 7
    s_add_u32 {sTMP[4]}, {sTMP[0]}, {sTMP[1]}
    v_lshlrev_b32 {t[0]}, 3, {vN}
    buffer_load_dwordx2 v[60:61], {t[0]}, {rA}, {sTMP[4]} offen
    s_lshl_b32 {sTMP[0]}, {sX}, 3
    s_add_u32 {sTMP[0]}, {sTMP[0]}, {sSLOT}
    s_lshl_b32 {sTMP[1]}, {sTMP[0]}, 12
    s_add_u32 {sTMP[1]}, {sTMP[1]}, {HP}
    s_lshl_b32 {sTMP[2]}, {sTMP[0]}, 8
    s_add_u32 {sTMP[2]}, {sTMP[2]}, {HH}
    s_waitcnt vmcnt(0)
    """)
    unpack4(84, "v60", "v61")
    a("s_sleep 8")
    loads = [f"buffer_load_dwordx4 {vr(64+4*i)}, {vL16}, {rWS}, {sTMP[1]} offen offset:{1024*i} sc1" for i in range(4)]
    poll(loads, [64, 68, 72, 76])
    stamp(12)
    sumgr([64, 68, 72, 76])
    allreduce(["v64", "v65", "v66", "v67"], [16, 32])
    a("v_cvt_pk_bf16_f32 v68, v64, v65\nv_cvt_pk_bf16_f32 v69, v66, v67")
    unpack4(64, "v68", "v69")
    a("""
    v_pk_add_f32 v[64:65], v[64:65], v[84:85]
    v_pk_add_f32 v[66:67], v[66:67], v[86:87]
    v_cvt_pk_bf16_f32 v68, v64, v65
    v_cvt_pk_bf16_f32 v69, v66, v67
    """)
    a(f"""
    v_lshl_or_b32 v48, v68, 16, {vT[0]}
    v_bfi_b32 v49, {sM1[2:4].join(['s','']) if False else 's74'}, {vT[1]}, v68
    v_lshl_or_b32 v50, v69, 16, {vT[2]}
    v_bfi_b32 v51, s74, {vT[3]}, v69
    s_mov_b64 exec, 0xffff
    buffer_store_dwordx4 v[48:51], {vL16}, {rWS}, {sTMP[2]} offen sc0 sc1
    s_mov_b64 exec, -1
    """)
    stamp(13)
    a("s_branch L_fin")
    a("L_O:")
    srd(rB, "out", 8192)
    a(f"""
    s_lshl_b32 {sTMP[0]}, {sX}, 4
    s_add_u32 {sTMP[0]}, {sTMP[0]}, {sSLOT}        ; b*16+cg
    s_lshl_b32 {sTMP[4]}, {sTMP[0]}, 6
    s_lshl_b32 {sTMP[2]}, {sTMP[0]}, 7
    s_add_u32 {sTMP[2]}, {sTMP[2]}, {HH}
    s_mul_i32 {sTMP[3]}, {sTMP[0]}, {56*128}
    s_add_u32 {sTMP[3]}, {sTMP[3]}, {DP}
    s_add_u32 {sTMP[0]}, {sTMP[3]}, 4096
    v_and_b32 {t[1]}, 7, {vL}
    v_lshlrev_b32 {t[0]}, 3, {t[1]}
    v_lshlrev_b32 {t[1]}, 4, {t[1]}
    s_sleep 30
    """)
    poll([f"buffer_load_dwordx4 v[96:99], {t[1]}, {rWS}, {sTMP[2]} offen sc1"], [96], sleep=3)
    stamp(12)
    a("s_sleep 24")
    loads = [f"buffer_load_dwordx4 {vr(64+4*i)}, {vL16}, {rWS}, {sTMP[3] if i < 4 else sTMP[0]} offen offset:{1024*(i&3)} sc1" for i in range(7)]
    poll(loads, [64 + 4 * i for i in range(7)])
    stamp(13)
    sumgr([64 + 4 * i for i in range(7)])
    a("s_nop 0")
    allreduce(["v64", "v65", "v66", "v67"], [8, 16, 32])
    a("v_cvt_pk_bf16_f32 v68, v64, v65\nv_cvt_pk_bf16_f32 v69, v66, v67")
    unpack4(64, "v68", "v69")
    a(f"""
    v_pk_add_f32 v[64:65], v[64:65], v[96:97]
    v_pk_add_f32 v[66:67], v[66:67], v[98:99]
    v_cvt_pk_bf16_f32 v68, v64, v65
    v_cvt_pk_bf16_f32 v69, v66, v67
    s_mov_b64 exec, 0xff
    buffer_store_dwordx2 v[68:69], {t[0]}, {rB}, {sTMP[4]} offen
    s_mov_b64 exec, -1
    s_cmp_lg_u32 {sTMP[4]}, 0
    s_cbranch_scc1 L_fin
    v_mov_b32 {t[2]}, {sT}
    s_mov_b64 exec, 1
    buffer_store_dword {t[2]}, {vZ}, {rWS}, 0 offen sc0 sc1
    s_mov_b64 exec, -1
    """)
    if probe is not None:
        a("""
        s_memrealtime s[92:93]
        s_waitcnt lgkmcnt(0)
        s_sub_u32 s96, s96, s94
        s_min_u32 s96, s96, 10000
        s_add_u32 s96, s96, s92
        L_probe:
        s_memrealtime s[92:93]
        s_waitcnt lgkmcnt(0)
        s_sub_i32 s97, s96, s92
        s_cmp_gt_i32 s97, 0
        s_cbranch_scc1 L_probe
        """)
    a("s_branch L_fin")
    a("L_F:")
    if stamps: a(f"v_writelane_b32 v62, 2, 2\nv_writelane_b32 v63, 0, 2")
    srd(rA, "wg", 512*3584); srd(rB, "wu", 512*3584); srd(rK, "wd", 1792*1024)
    a(f"""
    v_lshrrev_b32 {t[1]}, 2, {vL}
    v_mul_u32_u24 {t[1]}, 3584, {t[1]}
    v_and_b32 {t[2]}, 3, {vL}
    v_lshl_add_u32 {t[1]}, {t[2]}, 4, {t[1]}
    s_lshl_b32 {sTMP[2]}, {sWV}, 12
    s_lshl_b32 {sTMP[0]}, {sTMP[5]}, 6
    s_mul_i32 {sTMP[1]}, {sWV}, {4*57344}
    s_add_u32 {sTMP[0]}, {sTMP[0]}, {sTMP[1]}
    """)
    for i in range(4):
        a(f"s_add_u32 m0, {sTMP[2]}, {L_G + 1024*i}\ns_add_u32 {sTMP[1]}, {sTMP[0]}, {57344*i}\nbuffer_load_dwordx4 {t[1]}, {rA}, {sTMP[1]} offen {gupol} lds")
        a(f"s_add_u32 m0, {sTMP[2]}, {L_U + 1024*i}\ns_nop 0\nbuffer_load_dwordx4 {t[1]}, {rB}, {sTMP[1]} offen {gupol} lds")
    a(f"""
    s_lshl_b32 {sTMP[0]}, {sTMP[5]}, 15
    s_add_u32 {sTMP[0]}, {sTMP[0]}, {sTMP[2]}
    s_mul_i32 {sTMP[3]}, {sWV}, {4*1056}
    """)
    for i in range(4):
        a(f"s_add_u32 m0, {sTMP[3]}, {L_D + 1056*i}\ns_add_u32 {sTMP[1]}, {sTMP[0]}, {1024*i}\nbuffer_load_dwordx4 {vL16}, {rK}, {sTMP[1]} offen {wpol} lds")
    GA = 128; DA = 192
    a(f"""
    v_lshrrev_b32 {t[2]}, 2, {vN}
    v_lshl_add_u32 {t[2]}, {vG}, 3, {t[2]}
    v_mul_u32_u24 {t[2]}, 1056, {t[2]}
    v_and_b32 {t[3]}, 3, {vN}
    v_lshl_add_u32 {t[2]}, {t[3]}, 3, {t[2]}
    s_lshl_b32 {sTMP[0]}, {sWV}, 7
    s_add_u32 {sTMP[0]}, {sTMP[0]}, {L_D}
    v_add_u32 {t[2]}, {sTMP[0]}, {t[2]}
    """)
    tr_addr(t[3], 3, 6)
    a(f"""
    s_bfe_u32 {sTMP[0]}, {sWV}, 0x10001
    s_lshl_b32 {sTMP[0]}, {sTMP[0]}, 15
    s_and_b32 {sTMP[1]}, {sWV}, 1
    s_lshl_b32 {sTMP[1]}, {sTMP[1]}, 5
    s_add_u32 {sTMP[0]}, {sTMP[0]}, {sTMP[1]}
    s_add_u32 {sTMP[0]}, {sTMP[0]}, {L_G}
    v_add_u32 {t[3]}, {sTMP[0]}, {t[3]}
    s_mul_i32 {sTMP[4]}, {sWV}, 1040
    v_lshlrev_b32 {t[6]}, 3, {vL}
    v_add_u32 {t[6]}, {sTMP[4]}, {t[6]}
    v_and_b32 {t[8]}, 7, {vN}
    v_mul_u32_u24 {t[7]}, 1040, {t[8]}
    v_lshl_add_u32 {t[7]}, {vG}, 4, {t[7]}
    v_mul_u32_u24 {t[9]}, 80, {t[8]}
    v_lshl_add_u32 {t[10]}, {vG}, 4, {t[9]}
    v_lshl_add_u32 {t[9]}, {vG}, 3, {t[9]}
    s_lshr_b32 {sTMP[0]}, {sWV}, 1
    s_mul_i32 {sTMP[0]}, {sTMP[0]}, 640
    s_add_u32 {sTMP[0]}, {sTMP[0]}, {sTMP[1]}
    v_add_u32 {t[9]}, {sTMP[0]}, {t[9]}
    v_mul_u32_u24 {t[11]}, {16*56*128}, {t[8]}
    v_lshrrev_b32 {t[12]}, 3, {vN}
    v_lshl_add_u32 {t[11]}, {t[12]}, 6, {t[11]}
    v_lshl_add_u32 {t[11]}, {vG}, 4, {t[11]}
    s_mul_i32 {sTMP[1]}, {sWV}, {2*56*128}
    s_lshl_b32 {sTMP[2]}, {sTMP[5]}, 7
    s_add_u32 {sTMP[1]}, {sTMP[1]}, {sTMP[2]}
    s_add_u32 {sTMP[1]}, {sTMP[1]}, {DP}
    s_add_u32 {sTMP[2]}, {sTMP[1]}, {56*128}
    v_cmp_lt_u32 {sM2}, 7, {vN}
    s_lshl_b32 {sTMP[0]}, {sWV}, 11
    s_add_u32 {sTMP[0]}, {sTMP[0]}, {HH}
    s_waitcnt vmcnt(0)
    s_barrier
    """)
    stamp(9)
    for mt in range(4):
        for hf in range(2):
            r = DA + 4 * mt + 2 * hf
            a(f"ds_read_b64_tr_b16 v[{r}:{r+1}], {t[2]} offset:{hf*4*1056 + mt*32}")
    a("s_waitcnt lgkmcnt(0)")
    for ks in range(16):
        for hf in range(2):
            r = GA + 4 * ks + 2 * hf
            a(f"ds_read_b64_tr_b16 v[{r}:{r+1}], {t[3]} offset:{ks*2048 + hf*256}")
        if ks % 6 == 5: a("s_waitcnt lgkmcnt(0)")
    loads = [f"buffer_load_dwordx4 {vr(64+4*j)}, {vL16}, {rWS}, {sTMP[0]} offen offset:{1024*j} sc1" for j in range(2)]
    poll(loads, [64, 68])
    stamp(10)
    ln_row(64, 76, 80)
    a(f"""
    ds_write_b64 {t[6]}, v[76:77] offset:{L_A}
    ds_write_b64 {t[6]}, v[78:79] offset:{L_A+512}
    """)
    stamp(12)
    a(f"""
    s_cmp_ge_u32 {sWV}, 4
    s_waitcnt lgkmcnt(0)
    s_barrier
    s_cbranch_scc1 L_F2
    """)
    for ks in range(8): a(f"ds_read_b128 {vr(64+4*ks)}, {t[7]} offset:{L_A + 64*ks}")
    for ks in range(16):
        a(f"s_waitcnt lgkmcnt({7 if ks + 8 < 16 else 15 - ks})")
        c = "0" if ks == 0 else vr(ACC)
        a(f"v_mfma_f32_16x16x32_bf16 {vr(ACC)}, {vr(GA+4*ks)}, {vr(64+4*ks)}, {c}")
        if ks + 8 < 16: a(f"ds_read_b128 {vr(64+4*(ks+8))}, {t[7]} offset:{L_A + 64*(ks+8)}")
    a(f"""
    s_nop 7
    v_cvt_pk_bf16_f32 v40, v{ACC}, v{ACC+1}
    v_cvt_pk_bf16_f32 v41, v{ACC+2}, v{ACC+3}
    ds_write_b64 {t[9]}, v[40:41] offset:{L_X}
    s_waitcnt lgkmcnt(0)
    L_F2:
    s_barrier
    ds_read_b128 v[64:67], {t[10]} offset:{L_X}
    ds_read_b128 v[68:71], {t[10]} offset:{L_X+640}
    """)
    stamp(13)
    a("s_waitcnt lgkmcnt(1)")
    unpack4(72, "v64", "v65"); unpack4(76, "v66", "v67")
    a("s_waitcnt lgkmcnt(0)")
    unpack4(80, "v68", "v69"); unpack4(84, "v70", "v71")
    for i in range(4): a(f"v_pk_mul_f32 v[{72+2*i}:{73+2*i}], v[{72+2*i}:{73+2*i}], v[{80+2*i}:{81+2*i}]")
    for i in range(4): a(f"v_cvt_pk_bf16_f32 v{64+i}, v{72+2*i}, v{73+2*i}")
    a("s_nop 1")
    for mt in range(4): a(f"v_mfma_f32_16x16x32_bf16 {vr(80+4*mt)}, {vr(DA+4*mt)}, v[64:67], 0")
    a("s_nop 5")
    for jp in range(2):
        for i in range(4): a(f"v_cndmask_b32 v{48+4*jp+i}, v{80+8*jp+i}, v{84+8*jp+i}, {sM2}")
        tagpack(48 + 4 * jp, 48 + 4 * jp)
        a(f"buffer_store_dwordx4 {vr(48+4*jp)}, {t[11]}, {rWS}, {sTMP[1+jp]} offen sc0 sc1")
    stamp(11)
    a("L_fin:")
    if stamps:
        stamp(7)
        a(f"""
        s_lshl_b32 {sTMP[0]}, s2, 3
        s_add_u32 {sTMP[0]}, {sTMP[0]}, {sWV}
        s_lshl_b32 {sTMP[0]}, {sTMP[0]}, 7
        s_add_u32 {sTMP[0]}, {sTMP[0]}, {STAMP}
        v_lshlrev_b32 {t[0]}, 3, {vL}
        s_mov_b64 exec, 0xffff
        buffer_store_dwordx2 v[62:63], {t[0]}, {rWS}, {sTMP[0]} offen
        """)
    a("L_end:\ns_endpgm\n.p2align 4\nL_codeend:")
    body = a.text().replace(f"s_mov_b32 {sFF}, 0xff\n", f"s_mov_b32 {sFF}, 0xff\n    s_mov_b32 s74, 0xffff\n", 1)
    errs = hazard.check(body)
    if errs: print("\n".join(errs))
    hdr = open("cdna_kernels/" + NAME + ".s.ref").read().split("; Override")[0].rstrip("\n").split("\n")
    txt = kernel_file(hdr + [f"; @launch grid=(256,1,1) block=(512,1,1) lds={LDS_BYTES}"], [(NAME + "_kernel", body, 256, 100, 256)])
    open(fname, "w").write(txt)

if __name__ == "__main__":
    gen("k6.s")
    gen("k6s.s", stamps=True)
    gen("k6s_l0.s", stamps=True, LNH=0)
    gen("k6s_l2.s", stamps=True, LNH=2)
    gen("k6s_e6.s", stamps=True, NEND=6)
    gen("k6s_p3.s", stamps=True, psleep=3)
```
